```python
import torch

def _softmax(x, axis=-1):
    return torch.softmax(x, dim=axis)
def _gelu(x):
    return torch.nn.functional.gelu(x, approximate="tanh")
def _silu(x):
    return torch.nn.functional.silu(x)
def _sigmoid(x):
    return torch.sigmoid(x)
def _layernorm(x, axis=-1, eps=1e-5):
    m = x.mean(dim=axis, keepdim=True)
    v = x.var(dim=axis, keepdim=True, unbiased=False)
    return (x - m) / torch.sqrt(v + eps)
def _scatter_add(tgt, idx, src, axis=0):
    return tgt.clone().index_add_(axis, idx, src)
def _segment_sum(src, seg, n):
    out = torch.zeros((n,) + src.shape[1:], dtype=src.dtype)
    return out.index_add_(0, seg, src)
def _pad(x, pw):
    flat = tuple(v for pair in reversed(pw) for v in pair)
    return torch.nn.functional.pad(x, flat)

kernel_name = 'concat_heads__gqa_block_cached__mha_block_cached__near_ridge'

def setup_inputs():

    _w = (lambda a: (lambda t: t.to(torch.bfloat16) if t.is_floating_point() else t)(torch.as_tensor(a)))
    def _A_setup():
        B, Sq, D = 8, 112, 448
        Hq, Hkv, Sk, Dh = 16, 8, 512, 256
        assert Hq % Hkv == 0, (Hq, Hkv)
        return {
            "x": _w((lambda *s: torch.randn(*s, dtype=torch.bfloat16) * 0.8)(B, Sq, D)),
            "k_cache": _w((lambda *s: torch.randn(*s, dtype=torch.bfloat16) * 0.8)(B, Hkv, Sk, Dh)),
            "v_cache": _w((lambda *s: torch.randn(*s, dtype=torch.bfloat16) * 0.05)(B, Hkv, Sk, Dh)),
            "wq": _w((lambda *s: torch.randn(*s, dtype=torch.bfloat16) * 0.8)(D, Hq * Dh) * (D ** -0.5)),
            "wo": _w((lambda *s: torch.randn(*s, dtype=torch.bfloat16) * 0.05)(Hq * Dh, D) * ((Hq * Dh) ** -0.5)),
        }
    _A_in = _A_setup()

    def _B_setup():
        B, Sq, D = 8, 112, 448
        H, Sk, Dh = 16, 512, 256
        return {
            "x": _w((lambda *s: torch.randn(*s, dtype=torch.bfloat16) * 0.8)(B, Sq, D)),
            "k_cache": _w((lambda *s: torch.randn(*s, dtype=torch.bfloat16) * 0.8)(B, H, Sk, Dh)),
            "v_cache": _w((lambda *s: torch.randn(*s, dtype=torch.bfloat16) * 0.05)(B, H, Sk, Dh)),
            "wq": _w((lambda *s: torch.randn(*s, dtype=torch.bfloat16) * 0.8)(D, H * Dh) * (D ** -0.5)),
            "wo": _w((lambda *s: torch.randn(*s, dtype=torch.bfloat16) * 0.05)(H * Dh, D) * ((H * Dh) ** -0.5)),
        }
    _B_in = _B_setup()

    return {
        "A_x": _A_in["x"],
        "A_k_cache": _A_in["k_cache"],
        "A_v_cache": _A_in["v_cache"],
        "A_wq": _A_in["wq"],
        "A_wo": _A_in["wo"],
        "B_x": _B_in["x"],
        "B_k_cache": _B_in["k_cache"],
        "B_v_cache": _B_in["v_cache"],
        "B_wq": _B_in["wq"],
        "B_wo": _B_in["wo"],
    }

def reference(A_x, A_k_cache, A_v_cache, A_wq, A_wo, B_x, B_k_cache, B_v_cache, B_wq, B_wo):
    def _A_ref(x, k_cache, v_cache, wq, wo):
        B, Sq, D = x.shape
        Hq, Dh = 16, 256
        Hkv = k_cache.shape[1]
        rep = Hq // Hkv
        q = (lambda x, *d: x.permute(*d))((x @ wq).reshape(B, Sq, Hq, Dh), 0, 2, 1, 3)
        k = (lambda x, n, axis: torch.repeat_interleave(x, n, dim=axis))(k_cache, rep, axis=1)
        v = (lambda x, n, axis: torch.repeat_interleave(x, n, dim=axis))(v_cache, rep, axis=1)
        scores = torch.einsum("bhqd,bhkd->bhqk", q, k) * (Dh ** -0.5)
        p = _softmax(scores, axis=-1)
        o = torch.einsum("bhqk,bhkd->bhqd", p, v)
        return (lambda x, *d: x.permute(*d))(o, 0, 2, 1, 3).reshape(B, Sq, Hq * Dh) @ wo

    def _B_ref(x, k_cache, v_cache, wq, wo):
        B, Sq, D = x.shape
        H, Dh = 16, 256
        q = (lambda x, *d: x.permute(*d))((x @ wq).reshape(B, Sq, H, Dh), 0, 2, 1, 3)
        scores = torch.einsum("bhqd,bhkd->bhqk", q, k_cache) * (Dh ** -0.5)
        p = _softmax(scores, axis=-1)
        o = torch.einsum("bhqk,bhkd->bhqd", p, v_cache)
        return (lambda x, *d: x.permute(*d))(o, 0, 2, 1, 3).reshape(B, Sq, H * Dh) @ wo

    a = _A_ref(A_x, A_k_cache, A_v_cache, A_wq, A_wo)
    b = _B_ref(B_x, B_k_cache, B_v_cache, B_wq, B_wo)
    return torch.concatenate([a, b], axis=-1)
```

```python
NAME = 'concat_heads__gqa_block_cached__mha_block_cached__near_ridge'
HDR = open('cdna_kernels/' + NAME + '.s.ref').read().split('; Override launch geometry')[0]

class Asm:
    def __init__(self):
        self.lines = []
    def __call__(self, s=''):
        for l in s.split('\n'):
            self.lines.append('    ' + l.strip() if l.strip() and not l.strip().endswith(':') else l.strip())
    def label(self, l):
        self.lines.append(l + ':')
    def text(self):
        return '\n'.join(self.lines) + '\n'

def kernel_begin(name):
    return f""".globl {name}
.p2align 8
.type {name},@function
{name}:
"""

def kernel_desc(name, vgpr, sgpr, accum):
    return f""".amdhsa_kernel {name}
  .amdhsa_next_free_vgpr {vgpr}
  .amdhsa_next_free_sgpr {sgpr}
  .amdhsa_accum_offset {accum}
  .amdhsa_group_segment_fixed_size 0
  .amdhsa_kernarg_size 104
  .amdhsa_user_sgpr_count 2
  .amdhsa_user_sgpr_kernarg_segment_ptr 1
  .amdhsa_system_sgpr_workgroup_id_x 1
.end_amdhsa_kernel
"""

def make_file(launches, kernels):
    s = HDR
    for (k, g, b, lds) in launches:
        s += f"; @launch kernel={k} grid=({g},1,1) block=({b},1,1) lds={lds}\n"
    s += '.amdgcn_target "amdgcn-amd-amdhsa--gfx950"\n.text\n'
    for (name, body, v, sg, acc) in kernels:
        s += kernel_begin(name) + body
    s += '.section .rodata,"a"\n'
    for (name, body, v, sg, acc) in kernels:
        s += '.p2align 6\n' + kernel_desc(name, v, sg, acc)
    return s
```

```python
import sys
sys.path.insert(0, 'tools')
from gen_common import *

def prologue(a, nstamp):
    a(f"""
    s_cmp_ge_u32 s2, 256
    s_cbranch_scc1 L_exit
    s_memrealtime s[40:41]
    s_load_dwordx4 s[60:63], s[0:1], 88
    s_and_b32 s4, s2, 7         ; xcd
    s_lshr_b32 s5, s2, 3        ; slot
    s_and_b32 s6, s5, 1         ; hh
    s_lshr_b32 s7, s5, 1
    s_and_b32 s7, s7, 1         ; branch
    s_lshr_b32 s8, s5, 2        ; b
    s_lshl_b32 s9, s4, 1
    s_add_u32 s9, s9, s6        ; head
    s_mul_i32 s3, s7, 40
    s_add_u32 s0, s0, s3
    s_addc_u32 s1, s1, 0
    s_load_dwordx4 s[12:15], s[0:1], 0      ; x, k
    s_load_dwordx4 s[16:19], s[0:1], 16     ; v, wq
    s_load_dwordx2 s[20:21], s[0:1], 32     ; wo
    s_lshr_b32 s10, s9, 1
    s_cmp_eq_u32 s7, 0
    s_cselect_b32 s10, s10, s9              ; kvh
    s_cselect_b32 s11, 8, 16                ; Hkv
    s_mul_i32 s11, s11, s8
    s_add_u32 s11, s11, s10                 ; b*Hkv+kvh
    s_lshl_b32 s11, s11, 18                 ; * 262144
    s_waitcnt lgkmcnt(0)
    ; K srd s[24:27]
    s_add_u32 s24, s14, s11
    s_addc_u32 s25, s15, 0
    s_and_b32 s25, s25, 0xffff
    s_mov_b32 s26, 262144
    s_mov_b32 s27, 0x20000
    ; V srd s[28:31]
    s_add_u32 s28, s16, s11
    s_addc_u32 s29, s17, 0
    s_and_b32 s29, s29, 0xffff
    s_mov_b32 s30, 262144
    s_mov_b32 s31, 0x20000
    s_lshl_b32 s3, s9, 9
    s_add_u32 s32, s18, s3
    s_addc_u32 s33, s19, 0
    s_and_b32 s33, s33, 0xffff
    s_mov_b32 s34, {448*8192}
    s_mov_b32 s35, 0x20000
    s_mov_b32 s36, s62
    s_and_b32 s37, s63, 0xffff
    s_mov_b32 s38, 0x10000000
    s_mov_b32 s39, 0x20000
    v_lshrrev_b32 v1, 6, v0
    v_and_b32 v0, 63, v0
    s_nop 0
    v_readfirstlane_b32 s44, v1
    """)

def epilogue(a, nstamp):
    a(f"""
    s_waitcnt vmcnt(0) lgkmcnt(0)
    s_barrier
    s_memrealtime s[42:43]
    s_waitcnt lgkmcnt(0)
    s_cmp_lg_u32 s44, 0
    s_cbranch_scc1 L_exit
    v_mov_b32 v4, s40
    v_mov_b32 v5, s41
    v_mov_b32 v6, s42
    v_mov_b32 v7, s43
    s_lshl_b32 s3, s2, 4
    s_add_u32 s3, s3, {200<<20}
    v_mov_b32 v2, s3
    v_cmp_eq_u32 vcc, 0, v0
    s_and_saveexec_b64 s[46:47], vcc
    buffer_store_dwordx4 v[4:7], v2, s[36:39], 0 offen
    s_waitcnt vmcnt(0)
L_exit:
    s_endpgm
    """)

def gen(kind, inflight=32, reps=1, aux='', shared=False):
    a = Asm()
    prologue(a, 2)
    if shared:
        a('s_mov_b32 s24, s14\ns_and_b32 s25, s15, 0xffff\ns_mov_b32 s28, s16\ns_and_b32 s29, s17, 0xffff')
    if kind == 'coal':
        a("v_lshlrev_b32 v2, 4, v0")
        step = 1024; W = 4
    elif kind == 'afrag':
        a("""v_and_b32 v2, 15, v0
             v_lshlrev_b32 v2, 9, v2
             v_lshrrev_b32 v3, 4, v0
             v_lshl_add_u32 v2, v3, 4, v2""")
        W = 4
    elif kind == 'quad':
        a("""v_lshrrev_b32 v2, 2, v0
             v_lshlrev_b32 v2, 9, v2
             v_and_b32 v3, 3, v0
             v_lshl_add_u32 v2, v3, 4, v2""")
        W = 4
    elif kind == 'oct':
        a("""v_lshrrev_b32 v2, 3, v0
             v_lshlrev_b32 v2, 9, v2
             v_and_b32 v3, 7, v0
             v_lshl_add_u32 v2, v3, 4, v2""")
        W = 4
    elif kind == 'x2':
        a("""v_lshrrev_b32 v2, 4, v0
             v_lshlrev_b32 v2, 12, v2      ; g*8 rows*512
             v_and_b32 v3, 15, v0
             v_lshl_add_u32 v2, v3, 3, v2""")
        W = 2
    elif kind in ('dmacoal', 'dmaquad'):
        if kind == 'dmacoal':
            a("v_lshlrev_b32 v2, 4, v0")
        else:
            a("""v_lshrrev_b32 v2, 2, v0
             v_lshlrev_b32 v2, 9, v2
             v_and_b32 v3, 3, v0
             v_lshl_add_u32 v2, v3, 4, v2""")
        W = 4
    loads = []
    if kind in ('coal', 'dmacoal'):
        for i in range(64): loads.append(i * 1024)
        wavebase = 65536
    elif kind in ('afrag', 'quad', 'dmaquad'):
        for t in range(8):
            for ks in range(8): loads.append(t * 16 * 512 + ks * 64)
        wavebase = 65536
    elif kind == 'oct':
        for t in range(16):
            for ks in range(4): loads.append(t * 8 * 512 + ks * 128)
        wavebase = 65536
    elif kind == 'x2':
        for st in range(16):
            for j in range(8): loads.append(st * 32 * 512 + j * 512)
        wavebase = 128
    a(f"s_mul_i32 s45, s44, {wavebase}")
    a(f"s_mov_b32 s50, {reps}")
    a.label('L_rep')
    dma = kind.startswith('dma')
    n = 0
    NB = 112 if W == 4 else 224
    slots = 60
    for srd in ('s[24:27]', 's[28:31]'):
        for off in loads:
            big = off & ~0xFFF; small = off & 0xFFF
            a(f"s_add_u32 s48, s45, {big}")
            if dma:
                a(f"s_mov_b32 m0, {((n % 32) * 1024)}" if False else f"s_add_u32 m0, s51, {(n % 32) * 1024}")
                a(f"s_add_u32 s48, s45, {off}")
                a(f"buffer_load_dwordx4 v2, {srd}, s48 offen lds {aux}")
            else:
                d = 8 + (n % slots) * W
                a(f"buffer_load_dwordx{W} v[{d}:{d+W-1}], v2, {srd}, s48 offen offset:{small} {aux}")
            n += 1
            a(f"s_waitcnt vmcnt({inflight})")
    a("s_sub_u32 s50, s50, 1")
    a("s_cmp_lg_u32 s50, 0")
    a("s_cbranch_scc1 L_rep")
    epilogue(a, 2)
    body = a.text()
    if dma:
        body = body.replace("s_mov_b32 s50,", "s_lshl_b32 s51, s44, 15\n    s_mov_b32 s50,", 1)
    return make_file([('mb_kernel', 256, 256, 131072 if dma else 0)], [('mb_kernel', body, 256, 96, 256)])

if __name__ == '__main__':
    import os
    os.makedirs('mb', exist_ok=True)
    for kind in ('coal', 'afrag', 'quad', 'oct', 'x2', 'dmacoal', 'dmaquad'):
        for infl in (16, 48):
            for reps in (1, 50):
                open(f'l_{kind}_{infl}_{reps}.s', 'w').write(gen(kind, infl, reps))
            open(f's_{kind}_{infl}.s', 'w').write(gen(kind, infl, 50, shared=True))
    for aux, nm in (('nt', 'nt'), ('sc1', 'sc1'), ('sc0 sc1', 'sc01'), ('sc0 sc1 nt', 'sc01nt'), ('sc1 nt', 'sc1nt'), ('sc0 nt','sc0nt')):
        for kind in ('coal', 'x2', 'dmaquad'):
            open(f'a_{kind}_{nm}.s', 'w').write(gen(kind, 32, 1, aux=aux))
```

```python
import sys
sys.path.insert(0, 'tools')
from gen_common import *
from mb1 import prologue

def epilogue3(a):
    a(f"""
    s_waitcnt vmcnt(0) lgkmcnt(0)
    s_memtime s[52:53]
    s_memrealtime s[42:43]
    s_waitcnt lgkmcnt(0)
    s_sub_u32 s52, s52, s54
    s_subb_u32 s53, s53, s55
    s_add_u32 s52, s52, s40
    s_addc_u32 s53, s53, s41
    s_cmp_lg_u32 s44, 0
    s_cbranch_scc1 L_exit
    v_mov_b32 v4, s40
    v_mov_b32 v5, s41
    v_mov_b32 v6, s42
    v_mov_b32 v7, s43
    v_mov_b32 v8, s52
    v_mov_b32 v9, s53
    s_mul_i32 s3, s2, 24
    s_add_u32 s3, s3, {200<<20}
    v_mov_b32 v2, s3
    v_cmp_eq_u32 vcc, 0, v0
    s_and_saveexec_b64 s[46:47], vcc
    buffer_store_dwordx4 v[4:7], v2, s[36:39], 0 offen
    buffer_store_dwordx2 v[8:9], v2, s[36:39], 0 offen offset:16
    s_waitcnt vmcnt(0)
L_exit:
    s_endpgm
    """)

def gen(fill, big=False, waves=4, iters=64, nm=28):
    a = Asm()
    prologue(a, 2)
    a("""v_lshlrev_b32 v2, 4, v0
         v_lshrrev_b32 v3, 2, v0
         v_lshlrev_b32 v3, 9, v3
         v_and_b32 v4, 3, v0
         v_lshl_add_u32 v3, v4, 4, v3
         s_lshl_b32 s45, s44, 13
         v_add_u32 v3, s45, v3
         v_lshrrev_b32 v5, 4, v0
         v_lshlrev_b32 v5, 12, v5
         v_and_b32 v4, 15, v0
         v_lshl_add_u32 v5, v4, 3, v5
         s_lshl_b32 s45, s44, 7
         v_add_u32 v5, s45, v5
         v_lshlrev_b32 v6, 3, v0
         s_lshl_b32 s56, s44, 13
         s_add_u32 s56, s56, 65536
         s_mov_b32 s57, 0x05040100
         """)
    R = 256 if waves == 8 else 512
    for i in range(8, 128):
        a(f"v_mov_b32 v{i}, 0x3f803f80")
    nacc = 28 if waves == 4 else 14
    items = []
    for k, n in fill.items():
        for j in range(n): items.append((k, j, (j + 0.5) / n))
    items.sort(key=lambda x: x[2])
    a("s_barrier")
    a("s_memrealtime s[40:41]\ns_memtime s[54:55]\ns_waitcnt lgkmcnt(0)")
    a(f"s_mov_b32 s50, {iters}")
    a.label('L_rep')
    nmf = nm if not big else nm // 2
    it = 0
    dcount = 0
    for i in range(nmf):
        if big:
            d = 16 + 16 * (i % 6)
            a(f"v_mfma_f32_32x32x16_bf16 v[{d}:{d+15}], v[112:115], v[116:119], v[{d}:{d+15}]")
        else:
            d = 16 + 4 * (i % 24)
            a(f"v_mfma_f32_16x16x32_bf16 v[{d}:{d+3}], v[112:115], v[116:119], v[{d}:{d+3}]")
        while it < len(items) and items[it][2] <= (i + 1) / nmf:
            k, j, _ = items[it]; it += 1
            if k == 'dsr': a(f"ds_read_b128 v[{128 + 4*(j%8)}:{131 + 4*(j%8)}], v2 offset:{(j%16)*1024}")
            elif k == 'dsa' and waves == 8: a(f"ds_read_b128 v[{224 + 4*(j%8)}:{227 + 4*(j%8)}], v2 offset:{(j%16)*1024}")
            elif k == 'dsa': a(f"ds_read_b128 a[{4*(j%8)}:{3 + 4*(j%8)}], v2 offset:{(j%16)*1024}")
            elif k == 'tr': a(f"ds_read_b64_tr_b16 v[{160 + 2*(j%8)}:{161 + 2*(j%8)}], v6 offset:{(j%16)*512}")
            elif k == 'salu': a(f"s_add_u32 s58, s56, {j*64}")
            elif k == 'wait': a("s_waitcnt lgkmcnt(6)")
            elif k == 'valu': a(f"v_perm_b32 v{176 + j%8}, v200, v201, s57")
            elif k == 'exp': a(f"v_exp_f32 v{176 + j%8}, v200")
            elif k == 'dma':
                a(f"s_add_u32 m0, s56, {(j%4)*1024}")
                a(f"buffer_load_dwordx4 v3, s[24:27], 0 offen offset:{(j%8)*64} lds")
            elif k == 'dmanom0':
                a(f"buffer_load_dwordx4 v2, s[24:27], s56 offen offset:{(j%4)*1024} lds")
            elif k == 'x4': a(f"buffer_load_dwordx4 v[{208 + 4*(j%8)}:{211 + 4*(j%8)}], v3, s[24:27], 0 offen offset:{(j%8)*64}")
            elif k == 'x2': a(f"buffer_load_dwordx2 v[{208 + 2*(j%8)}:{209 + 2*(j%8)}], v5, s[28:31], 0 offen offset:{(j%8)*512}")
            elif k == 'st': a(f"buffer_store_dwordx4 v[{208 + 4*(j%8)}:{211 + 4*(j%8)}], v2, s[36:39], s59 offen offset:{(j%4)*1024}")
    if any(k in fill for k in ('dma', 'dmanom0', 'x4', 'x2', 'st')):
        a("s_waitcnt vmcnt(24)")
    a("s_sub_u32 s50, s50, 1")
    a("s_cmp_lg_u32 s50, 0")
    a("s_cbranch_scc1 L_rep")
    epilogue3(a)
    txt = a.text()
    txt = txt.replace("s_barrier\n    s_memrealtime", "s_mov_b32 m0, s56\n    s_lshl_b32 s59, s2, 16\n    s_lshl_b32 s60, s44, 12\n    s_add_u32 s59, s59, s60\n    s_barrier\n    s_memrealtime", 1)
    return make_file([('mb_kernel', 256, 64 * waves, 140000)], [('mb_kernel', txt, R, 96, 256 if waves == 4 else 256)])

CASES = {
 'base': {},
 'dsr7': {'dsr': 7}, 'dsr14': {'dsr': 14}, 'dsr28': {'dsr': 28},
 'tr16': {'tr': 16}, 'tr28': {'tr': 28},
 'salu28': {'salu': 28}, 'salu56': {'salu': 56}, 'salu84': {'salu': 84},
 'wait28': {'wait': 28}, 'wait56': {'wait': 56},
 'valu28': {'valu': 28}, 'valu56': {'valu': 56}, 'valu84': {'valu': 84},
 'exp28': {'exp': 28},
 'dma2': {'dma': 2}, 'dma4': {'dma': 4}, 'dma8': {'dma': 8},
 'dman4': {'dmanom0': 4}, 'dman8': {'dmanom0': 8},
 'x4_4': {'x4': 4}, 'x4_8': {'x4': 8},
 'x2_8': {'x2': 8}, 'x2_16': {'x2': 16},
 'st4': {'st': 4},
 'mix1': {'dsr': 7, 'tr': 8, 'dma': 6, 'wait': 8, 'dsa': 4},
 'mix2': {'dsr': 7, 'valu': 16, 'x2': 8, 'dma': 5, 'wait': 8, 'dsa': 4},
}
if __name__ == '__main__':
    import os
    os.makedirs('mb', exist_ok=True)
    names = []
    for nm, f in CASES.items():
        for big in (False, True):
            for w in (4, 8):
                fn = f'm3_{nm}_{"b" if big else "s"}{w}.s'
                open(fn, 'w').write(gen(f, big, w))
                names.append(fn)
    print(len(names))
```

```python
import re

TRANS = ('v_exp_f32', 'v_log_f32', 'v_rcp_f32', 'v_rsq_f32', 'v_sqrt_f32', 'v_sin_f32', 'v_cos_f32')

def regs_of(tok):
    tok = tok.strip()
    if tok.startswith('-'): tok = tok[1:]
    if tok.startswith('|'): tok = tok.strip('|')
    m = re.fullmatch(r'([vas])(\d+)', tok)
    if m: return {(m.group(1), int(m.group(2)))}
    m = re.fullmatch(r'([vas])\[(\d+):(\d+)\]', tok)
    if m: return {(m.group(1), i) for i in range(int(m.group(2)), int(m.group(3)) + 1)}
    if tok == 'vcc': return {('s', 'vcc')}
    if tok == 'exec': return {('s', 'exec')}
    if tok == 'm0': return {('s', 'm0')}
    return set()

class Ins:
    __slots__ = ('text', 'op', 'cls', 'dst', 'src', 'ab', 'c', 'states', 'lds', 'wide_store', 'data')

def split_ops(rest):
    out = []; depth = 0; cur = ''
    for ch in rest:
        if ch == '[': depth += 1
        if ch == ']': depth -= 1
        if ch == ',' and depth == 0:
            out.append(cur); cur = ''
        else:
            cur += ch
    if cur.strip(): out.append(cur)
    return [o.strip() for o in out]

def parse(text):
    t = text.split(';')[0].strip()
    i = Ins(); i.text = text; i.dst = set(); i.src = set(); i.ab = set(); i.c = set(); i.states = 1
    i.lds = False; i.wide_store = False; i.data = set()
    if not t or t.endswith(':') or t.startswith('.'):
        i.op = ''; i.cls = 'none'; i.states = 0; return i
    sp = t.split(None, 1)
    op = sp[0]; rest = sp[1] if len(sp) > 1 else ''
    i.op = op
    ops = split_ops(rest)
    mods = []
    if ops:
        last = ops[-1].split()
        ops[-1] = last[0]; mods = last[1:]
    if op == 's_nop':
        i.cls = 'salu'; i.states = int(ops[0]) + 1; return i
    if op.startswith('v_mfma'):
        i.cls = 'mfma'; i.dst = regs_of(ops[0]); i.ab = regs_of(ops[1]) | regs_of(ops[2]); i.c = regs_of(ops[3])
        i.src = i.ab | i.c; return i
    if op.startswith('v_'):
        i.cls = 'trans' if op.replace('_e32', '') in TRANS else 'valu'
        if op.startswith('v_permlane'):
            i.cls = 'permlane'; i.dst = regs_of(ops[0]) | regs_of(ops[1]); i.src = set(i.dst); return i
        i.dst = regs_of(ops[0])
        for o in ops[1:]: i.src |= regs_of(o)
        if op.startswith('v_cndmask') and len(ops) == 3: i.src |= {('s', 'vcc')}
        if op.startswith('v_fmac') or op.startswith('v_mac'): i.src |= i.dst
        return i
    if op.startswith('ds_read'):
        i.cls = 'dsr'; i.dst = regs_of(ops[0]); i.src = regs_of(ops[1]); return i
    if op.startswith('ds_write'):
        i.cls = 'dsw'
        for o in ops: i.src |= regs_of(o)
        return i
    if op.startswith('buffer_load'):
        if 'lds' in mods:
            i.cls = 'vml'; i.lds = True
            for o in ops: i.src |= regs_of(o)
            i.src |= {('s', 'm0')}
        else:
            i.cls = 'vml'; i.dst = regs_of(ops[0])
            for o in ops[1:]: i.src |= regs_of(o)
        return i
    if op.startswith('buffer_store') or op.startswith('buffer_atomic') or op.startswith('global_store') or op.startswith('global_atomic'):
        i.cls = 'vms'
        for o in ops: i.src |= regs_of(o)
        i.data = regs_of(ops[0]) if op.startswith('buffer') else regs_of(ops[1])
        i.wide_store = ('x3' in op or 'x4' in op)
        return i
    if op.startswith('global_load'):
        i.cls = 'vml'; i.dst = regs_of(ops[0])
        for o in ops[1:]: i.src |= regs_of(o)
        return i
    if op.startswith('s_'):
        i.cls = 'salu'
        if op.startswith(('s_cmp', 's_cbranch', 's_branch', 's_waitcnt', 's_barrier', 's_endpgm', 's_setprio', 's_sleep')):
            for o in ops: i.src |= regs_of(o)
            return i
        if op.startswith('s_load') or op.startswith('s_memrealtime') or op.startswith('s_memtime'):
            i.cls = 'smem'
        i.dst = regs_of(ops[0]) if ops else set()
        for o in ops[1:]: i.src |= regs_of(o)
        return i
    raise ValueError('cannot parse: ' + text)

def isv(rs): return {r for r in rs if r[0] in 'va'}
def iss(rs): return {r for r in rs if r[0] == 's'}
VALU = ('valu', 'trans', 'permlane')

def required(p, c):
    need = 0
    if p.cls in VALU:
        w = isv(p.dst)
        if c.cls == 'mfma' and (w & c.src): need = max(need, 2)
        if c.cls == 'permlane' and (w & c.src): need = max(need, 2)
        if p.cls == 'trans' and c.cls in ('valu', 'permlane') and (w & c.src): need = max(need, 1)
        if c.op.startswith('v_readfirstlane') or c.op.startswith('v_readlane'):
            if w & c.src: need = max(need, 1)
        sw = iss(p.dst)
        if sw:
            if c.cls in ('vml', 'vms') and (sw & c.src): need = max(need, 5)
            if c.cls in VALU and (sw & c.src): need = max(need, 2)
        if p.op.startswith('v_permlane') : pass
    if p.cls == 'mfma':
        d = p.dst
        if c.cls == 'mfma':
            if d & c.ab: need = max(need, 8)
            if (d & c.c) and (c.c != d): need = max(need, 6)
            if (d & c.dst) and (c.dst != d): need = max(need, 8)
        elif c.cls in VALU:
            if d & (c.src | c.dst): need = max(need, 8)
            if p.c & c.dst: need = max(need, 3)
        elif c.cls in ('dsr', 'dsw', 'vml', 'vms'):
            if d & (c.src | c.dst): need = max(need, 8)
            if p.c & c.dst: need = max(need, 3)
    if p.cls == 'salu' and ('s', 'm0') in p.dst and c.lds: need = max(need, 1)
    if p.cls == 'vms' and p.wide_store:
        if c.cls in VALU and (p.data & c.dst): need = max(need, 2)
        elif (p.data & c.dst): need = max(need, 1)
    return need

class Emit:
    def __init__(self):
        self.lines = []
        self.hist = []
        self.vm = 0; self.vm_done = 0
        self.lg = 0; self.lg_done = 0
        self.out_vm = []
        self.out_lg = []
        self.nops = 0
        self.check = True
        self.ninstr = 0
        self.vm_time = []
    def raw(self, text):
        self.lines.append(text)
    def label(self, l):
        self.lines.append(l + ':')
    def comment(self, t):
        self.lines.append('    ; ' + t)
    def e(self, text):
        for l in text.split('\n'):
            l = l.strip()
            if not l: continue
            if l.endswith(':'): self.label(l[:-1]); continue
            if l.startswith(';'): self.lines.append('    ' + l); continue
            self._e(l)
    def _e(self, l):
        i = parse(l)
        dist = 0; need = 0
        for p in reversed(self.hist):
            r = required(p, i)
            if r - dist > need: need = r - dist
            dist += p.states
            if dist >= 10: break
        if need > 0:
            n = parse(f's_nop {need-1}')
            self.lines.append(f'    s_nop {need-1}')
            self.hist.append(n); self.nops += 1
        if self.check and i.cls != 'none':
            touched = isv(i.src) | isv(i.dst)
            for idx, d in self.out_vm:
                if idx >= self.vm_done and (d & touched):
                    raise RuntimeError(f'use of in-flight VMEM dst (idx {idx}, done {self.vm_done}): {l}')
            for idx, d in self.out_lg:
                if idx >= self.lg_done and (d & touched):
                    raise RuntimeError(f'use of in-flight LDS dst (idx {idx}, done {self.lg_done}): {l}')
        self.lines.append('    ' + l)
        self.ninstr += 1
        self.hist.append(i)
        if len(self.hist) > 24: self.hist = self.hist[-24:]
        ret = None
        if i.cls in ('vml', 'vms'):
            ret = self.vm; self.vm += 1
            while len(self.vm_time) <= ret: self.vm_time.append(0)
            self.vm_time[ret] = self.ninstr
            if i.dst: self.out_vm.append((ret, isv(i.dst)))
            self.out_vm = [(a, b) for a, b in self.out_vm if a >= self.vm_done]
            if self.vm - self.vm_done > 63 and self.check:
                raise RuntimeError(f'more than 63 VMEM possibly outstanding at: {l}')
        elif i.cls in ('dsr', 'dsw'):
            ret = self.lg; self.lg += 1
            if i.dst: self.out_lg.append((ret, isv(i.dst)))
            self.out_lg = [(a, b) for a, b in self.out_lg if a >= self.lg_done]
        self.last = ret
        return ret
    def op(self, text):
        return self._e(text.strip())
    def wait_vm(self, idx):
        if idx is None or idx < self.vm_done: return
        n = self.vm - idx - 1
        assert n <= 63
        self._e(f's_waitcnt vmcnt({n})')
        self.vm_done = idx + 1
    def vm_room(self, age, limit=62):
        if self.vm - self.vm_done < limit: return True
        idx = None
        for k in range(self.vm_done, self.vm):
            if self.ninstr - self.vm_time[k] >= age: idx = k
            else: break
        if idx is None: return False
        self.wait_vm(idx)
        return self.vm - self.vm_done < limit
    def wait_lg(self, idx):
        if idx is None or idx < self.lg_done or idx < 0: return
        n = self.lg - idx - 1
        if n > 15: n = 15
        self._e(f's_waitcnt lgkmcnt({n})')
        self.lg_done = self.lg - n
    def wait_all(self):
        self._e('s_waitcnt vmcnt(0) lgkmcnt(0)')
        self.vm_done = self.vm; self.lg_done = self.lg
    def wait_lg_all(self):
        if self.lg_done < self.lg:
            self._e('s_waitcnt lgkmcnt(0)')
            self.lg_done = self.lg
    def wait_vm_all(self):
        if self.vm_done < self.vm:
            self._e('s_waitcnt vmcnt(0)')
            self.vm_done = self.vm
    def barrier(self):
        self._e('s_barrier')
    def run(self, mfmas, fillers):
        fillers = sorted(fillers, key=lambda x: x[0])
        j = 0
        while j < len(fillers) and fillers[j][0] < 0:
            fillers[j][1](); j += 1
        for k, (txt, pre) in enumerate(mfmas):
            if pre: pre()
            self._e(txt)
            while j < len(fillers) and fillers[j][0] <= k:
                fillers[j][1](); j += 1
        while j < len(fillers):
            fillers[j][1](); j += 1
    def text(self):
        return '\n'.join(self.lines) + '\n'

def spread(n, lo, hi):
    if n == 1: return [lo]
    return [lo + (hi - lo) * k / (n - 1) for k in range(n)]
```

```python
import sys, argparse
sys.path.insert(0, 'tools')
from emit import *
from gen_common import make_file

class Cfg:
    stamps = False
    passes = [[0, 1], [2, 3], [4, 5], [6, 7]]
    nt_k = ' nt'; nt_v = ' nt'; nt_wq = ''; nt_x = ''; nt_wo = ''
    st_part = ''
    lat0 = 3000
    lat = 1500
    d_kv = 460
    d_w = 120
    delay = 40
    look = 10
    k_in_p1 = [1]*14
    k_first = 3
    x2_at = 2; x3_at = 5
    nrows = 7
    rows01_stop = 3
    touch = False
    no_dma = ()
    no_park = ()
    no_b = False
    wq_stride = 8192

RING0 = 100352
MAXA = 157696
SUMA = 159744
LDS_BYTES = 163840

SX, SK, SV, SWQ, SWO, SWS, SWO2 = 20, 24, 28, 32, 36, 40, 44
S_W = 48; S_RING = 49
S_M0 = 50
S_OFF = 64; S_XM = 65; S_XM3 = 66; S_X3O = 67
S_C = 68
S_ST = 18; S_T = 19
S_STAMP = 72

def srd(b): return f's[{b}:{b+3}]'
def vr(b, n=4): return f'v[{b}:{b+n-1}]'
def ar(b, n=4): return f'a[{b}:{b+n-1}]'
MF = 'v_mfma_f32_16x16x32_bf16'

class TEmit(Emit):
    def __init__(self):
        super().__init__()
        self.t = 0; self.tm = -100
        self.lg_time = {}; self.nmem = 0
    def wait_lg_lazy(self, idx, age=160):
        if idx is None or idx < 0 or idx < self.lg_done: return
        j = idx
        while j + 1 < self.lg and self.t - self.lg_time[j + 1] >= age: j += 1
        self.wait_lg(j)
    def _e(self, l):
        r = super()._e(l)
        i = self.hist[-1]
        if i.cls in ('dsr', 'dsw'): self.lg_time[r] = self.t
        if i.cls in ('dsr', 'dsw', 'vml', 'vms'): self.nmem += 1
        if i.cls == 'mfma':
            self.t = max(self.t, self.tm + 16); self.tm = self.t; self.t += 8
        elif i.cls == 'trans': self.t += 8
        elif i.cls in ('valu', 'permlane'): self.t += 4
        else: self.t += 2
        return r

class Item:
    def __init__(s, kind, *a):
        s.kind = kind; s.a = a
        s.done = 0
        s.vm = None; s.arr = None; s.row = None
        s.parked = 0; s.rd = None; s.reg = None; s.tpark = None
    def np(s): return 2 if s.kind != 'x' else 1
    def __repr__(s): return f'{s.kind}{s.a}'

class Gen:
    def __init__(self, cfg):
        self.c = cfg
        self.g = TEmit()
        self.nst = 0
        self.log = []

    def stamp(self, name=''):
        self.log.append((name, self.g.t, self.ip, self.pp))
        if not self.c.stamps: return
        g = self.g
        k = S_STAMP + 2 * self.nst
        g.e(f's_memrealtime s[{k}:{k+1}]')
        g.e('s_waitcnt lgkmcnt(0)')
        g.lg_done = g.lg
        self.nst += 1

    def build_order(self):
        c = self.c
        korder = []
        for T in c.passes:
            for wp in range(4):
                for t in T: korder.append(Item('k', t, wp))
        o = []
        kq = list(korder)
        def X(jj):
            n = 7 if jj < 3 else 4
            for r in range(n): o.append(Item('x', jj, r))
        def W(s): o.append(Item('wq', s, 0)); o.append(Item('wq', s, 1))
        X(0); W(0); W(1); X(1)
        for _ in range(c.k_first): o.append(kq.pop(0))
        for s in range(2, 14):
            W(s)
            for _ in range(c.k_in_p1[s]):
                if kq: o.append(kq.pop(0))
            if s == c.x2_at: X(2)
            if s == c.x3_at: X(3)
        o += kq
        for u in range(16):
            for h in range(2): o.append(Item('v', u, h))
        for gam in range(2):
            for i in range(8):
                for h in range(2): o.append(Item('wo', gam, i, h))
        self.items = o
        self.by = {(it.kind,) + it.a: it for it in o}
        self.ip = 0; self.pp = 0
        self.rows = list(range(c.nrows))
        self.row_prev = {}
        self.norefill = set()
        self.afree = [True] * 32
        self.blk = {}
        self.last_arr = 0
        self.t0 = None
        self.addr = {}

    def a_alloc(self, it):
        if it.kind == 'k':
            cand = [u for u in range(32) if self.afree[u] and not self.afree[u ^ 1]]
            if not cand: cand = [u for u in range(32) if self.afree[u]]
            if not cand: return None
            u = cand[0]; self.afree[u] = False
            return 8 * u
        key = (it.kind,) + it.a[:-1]
        if key in self.blk: return self.blk[key]
        for u in range(0, 32, 2):
            if self.afree[u] and self.afree[u + 1]:
                self.afree[u] = self.afree[u + 1] = False
                self.blk[key] = 8 * u
                return 8 * u
        return None
    def a_can(self, it):
        if it.reg is not None: return True
        if it.kind == 'k': return any(self.afree)
        key = (it.kind,) + it.a[:-1]
        if key in self.blk: return True
        return any(self.afree[u] and self.afree[u + 1] for u in range(0, 32, 2))
    def a_release_k(self, t, wp): self.afree[self.by[('k', t, wp)].reg // 8] = True
    def a_release_w(self, key):
        b = self.blk[key]; self.afree[b // 8] = self.afree[b // 8 + 1] = True

    def free_row(self, force):
        g = self.g
        best = None
        for r in self.rows:
            if r in self.norefill: continue
            p = self.row_prev.get(r)
            if p is None: return r
            if force or g.t - p.tpark >= self.c.delay or p.rd < g.lg_done:
                if best is None or p.tpark < self.row_prev[best].tpark: best = r
        return best
    def can_issue(self, force=False):
        if self.ip >= len(self.items): return False
        it = self.items[self.ip]
        if it.kind == 'x' or it.done > 0: return True
        if it.kind not in self.addr: return False
        return self.free_row(force) is not None
    def issue(self, force=False):
        g = self.g; c = self.c
        it = self.items[self.ip]
        if it.kind == 'x':
            jj, r = it.a
            if jj < 3:
                g.e(f's_add_u32 m0, s{S_XM}, {jj*28672 + r*1024}')
                off = r * 14336 + jj * 256
                if off == 0: so = '0'
                else: g.e(f's_mov_b32 s{S_OFF}, {off}'); so = f's{S_OFF}'
                it.vm = self.dma('x', f'buffer_load_dwordx4 v{self.addr["x"]}, {srd(SX)}, {so} offen{c.nt_x} lds')
            else:
                g.e(f's_add_u32 m0, s{S_XM3}, {r*1024}')
                g.e(f's_add_u32 s{S_OFF}, s{S_X3O}, {r*14336}')
                it.vm = self.dma('x', f'buffer_load_dwordx4 v{self.addr["x3"]}, {srd(SX)}, s{S_OFF} offen{c.nt_x} lds')
            dl = c.d_w / 2
        else:
            e = it.done
            if e == 0:
                it.row = self.free_row(force)
                self.rows.remove(it.row)
                p = self.row_prev.get(it.row)
                if p is not None: g.wait_lg(p.rd)
            if it.kind == 'k':
                t, wp = it.a; off = t * 8192 + (2 * wp + e) * 64; s = SK; nt = c.nt_k; dl = c.d_kv
            elif it.kind == 'wq':
                st, h = it.a; off = (32 * st + 16 * e + 4 * h) * c.wq_stride; s = SWQ; nt = c.nt_wq; dl = c.d_w
            elif it.kind == 'v':
                u, h = it.a; off = (32 * u + 16 * h + 8 * e) * 512; s = SV; nt = c.nt_v; dl = c.d_kv
            elif it.kind == 'wo':
                gam, i, h = it.a; off = (32 * i + 16 * h + 8 * e) * 896 + 128 * gam; s = SWO2 if gam else SWO; nt = c.nt_wo; dl = c.d_w
            g.e(f's_mov_b32 m0, s{S_M0 + 2*it.row + e}')
            if off == 0: so = '0'
            else: g.e(f's_mov_b32 s{S_OFF}, {off}'); so = f's{S_OFF}'
            it.vm = self.dma(it.kind, f'buffer_load_dwordx4 v{self.addr[it.kind]["d"]}, {srd(s)}, {so} offen{nt} lds')
        it.done += 1
        if it.done == it.np():
            if self.t0 is None: self.t0 = g.t
            lat = max(c.lat, self.t0 + c.lat0 - g.t)
            it.arr = max(g.t + lat, self.last_arr + dl); self.last_arr = it.arr
            self.ip += 1
    def dma(self, kind, txt):
        if kind in self.c.no_dma: return None
        return self.g.op(txt)
    def rdl(self, kind, txt):
        if kind in self.c.no_park: return -1
        return self.g.op(txt)
    def bread_(self, txt):
        if self.c.no_b: return None
        return self.g.op(txt)
    def skip_x(self):
        while self.pp < len(self.items) and self.items[self.pp].kind == 'x': self.pp += 1
    def park_head(self):
        self.skip_x()
        if self.pp >= len(self.items): return None
        it = self.items[self.pp]
        if it.done < it.np(): return None
        return it
    def park(self, it):
        g = self.g
        if it.parked == 0:
            g.wait_vm(it.vm); g.t = max(g.t, it.arr)
            it.reg = self.a_alloc(it)
            assert it.reg is not None, ('no AGPR space', it)
        ro = it.row * 8192
        A = self.addr[it.kind]
        if it.kind == 'k':
            for e in range(2):
                it.rd = self.rdl(it.kind, f'ds_read_b128 {ar(it.reg + 4*e)}, v{A["r"]} offset:{ro + e*1024}')
            it.parked = 2
        else:
            h = it.a[-1]
            for t in (2 * it.parked, 2 * it.parked + 1):
                if it.kind == 'v': b = t & 1; o = (t >> 1) * 512
                else: b = t & 1; o = (t >> 1) * 512
                it.rd = self.rdl(it.kind, f'ds_read_b64_tr_b16 {ar(it.reg + 4*t + 2*h, 2)}, v{A["r"][b]} offset:{ro + o}')
            it.parked += 1
        if it.parked == 2:
            it.tpark = g.t
            self.row_prev[it.row] = it
            self.rows.append(it.row)
            self.pp += 1
    def tick(self):
        g = self.g
        if self.ip < len(self.items) and self.items[self.ip].done > 0 and self.items[self.ip].kind != 'x':
            self.issue(); return True
        it = self.park_head()
        if it is not None and it.parked == 1: self.park(it); return True
        if self.can_issue(): self.issue(); return True
        if it is not None and it.arr <= g.t and self.a_can(it): self.park(it); return True
        return False
    def ensure(self, its):
        for x in its:
            while x.parked < 2:
                it = self.park_head()
                if self.ip < len(self.items) and self.items[self.ip].done > 0 and self.items[self.ip].kind != 'x': self.issue()
                elif it is not None and it.parked == 1: self.park(it)
                elif self.can_issue(): self.issue()
                elif it is not None: self.park(it)
                elif self.can_issue(force=True): self.issue(force=True)
                else: raise RuntimeError(f'stream deadlock at {x}')
    def ensure_issued(self, x):
        while x.done < x.np():
            it = self.park_head()
            if self.can_issue(force=True): self.issue(force=True)
            elif it is not None: self.park(it)
            else: raise RuntimeError('deadlock')
    def wait_x(self, jj):
        n = 7 if jj < 3 else 4
        it = self.by[('x', jj, n - 1)]
        self.ensure_issued(it)
        self.g.wait_vm(it.vm); self.g.t = max(self.g.t, it.arr)
        self.g.barrier()
    def retire_rows(self, rows):
        self.norefill |= set(rows)
        while any(r not in self.rows for r in rows):
            it = self.park_head()
            if it is None or it.parked == 0 and not self.a_can(it): raise RuntimeError('retire deadlock')
            self.park(it)
            while self.ip < len(self.items) and self.items[self.ip].done == 1 and self.items[self.ip].kind != 'x': self.issue()
        for r in rows:
            p = self.row_prev.get(r)
            if p is not None: self.g.wait_lg(p.rd)
    def wfrag(self, key, t): return ar(self.blk[key] + 4 * t)
    def wwait(self, kind, *a):
        self.g.wait_lg(self.by[(kind,) + a + (1,)].rd)

    def prologue(self):
        g = self.g; c = self.c
        self.build_order()
        g.e(f"""
        s_cmp_ge_u32 s2, 256
        s_cbranch_scc1 L_exit
        s_load_dwordx2 s[14:15], s[0:1], 96
        s_and_b32 s4, s2, 7
        s_lshr_b32 s5, s2, 3
        s_and_b32 s6, s5, 1
        s_lshr_b32 s7, s5, 1
        s_and_b32 s7, s7, 1
        s_mul_i32 s3, s7, 40
        s_add_u32 s0, s0, s3
        s_addc_u32 s1, s1, 0
        s_load_dwordx4 s[8:11], s[0:1], 0
        s_load_dwordx2 s[16:17], s[0:1], 16
        s_load_dwordx2 s[70:71], s[0:1], 24
        s_load_dwordx2 s[12:13], s[0:1], 32
        """)
        if c.stamps:
            g.e(f's_memrealtime s[{S_STAMP}:{S_STAMP+1}]'); self.nst = 1
        g.e(f"""
        v_lshrrev_b32 v1, 6, v0
        v_and_b32 v10, 63, v0
        s_lshr_b32 s5, s5, 2
        v_readfirstlane_b32 s{S_W}, v1
        s_lshl_b32 s3, s4, 1
        s_add_u32 s6, s3, s6
        s_lshr_b32 s3, s6, 1
        s_cmp_eq_u32 s7, 0
        s_cselect_b32 s3, s3, s6
        s_cselect_b32 s4, 8, 16
        s_mul_i32 s4, s4, s5
        s_add_u32 s4, s4, s3
        s_lshl_b32 s4, s4, 18
        v_lshlrev_b32 v0, 4, v10
        v_lshrrev_b32 v11, 2, v10
        v_and_b32 v12, 3, v10
        v_lshrrev_b32 v13, 5, v10
        v_mul_u32_u24 v14, 3, v13
        v_xor_b32 v14, v12, v14
        v_lshlrev_b32 v14, 4, v14
        s_movk_i32 s3, 896
        v_mad_u32_u24 v8, v11, s3, v14
        s_lshl_b32 s3, s{S_W}, 6
        v_add_u32 v8, s3, v8
        s_mul_i32 s{S_XM}, s{S_W}, 7168
        s_lshl_b32 s3, s{S_W}, 11
        s_add_u32 s{S_RING}, s3, {RING0}
        """)
        g.e(f"""
        v_bfe_u32 v15, v10, 4, 1
        v_and_b32 v16, 3, v11
        v_lshl_add_u32 v16, v15, 3, v16
        v_mul_u32_u24 v16, {c.wq_stride}, v16
        v_xor_b32 v17, v12, v15
        v_lshlrev_b32 v17, 4, v17
        v_lshl_add_u32 v17, v13, 6, v17
        s_lshl_b32 s3, s{S_W}, 7
        v_add3_u32 v5, v16, v17, s3
        """)
        for k in range(14):
            g.e(f's_add_u32 s{S_M0+k}, s{S_RING}, {(k >> 1) * 8192 + (k & 1) * 1024}')
        g.e(f"""
        s_mul_i32 s3, s5, 100352
        s_lshl_b32 s{S_T}, s6, 9
        s_waitcnt lgkmcnt(0)
        s_add_u32 s{SX}, s8, s3
        s_addc_u32 s{SX+1}, s9, 0
        s_and_b32 s{SX+1}, s{SX+1}, 0xffff
        s_mov_b32 s{SX+2}, 100352
        s_mov_b32 s{SX+3}, 0x20000
        s_add_u32 s{SWQ}, s70, s{S_T}
        s_addc_u32 s{SWQ+1}, s71, 0
        s_and_b32 s{SWQ+1}, s{SWQ+1}, 0xffff
        s_sub_u32 s{SWQ+2}, {448*8192}, s{S_T}
        s_mov_b32 s{SWQ+3}, 0x20000
        """)
        g.lg_done = g.lg
        self.addr['x'] = 8; self.addr['x3'] = 9
        self.addr['wq'] = {'d': 5, 'r': (6, 7)}
        while self.items[self.ip].kind in ('x', 'wq') and self.can_issue(): self.issue()
        g.e(f"""
        s_add_u32 s{SK}, s10, s4
        s_addc_u32 s{SK+1}, s11, 0
        s_and_b32 s{SK+1}, s{SK+1}, 0xffff
        s_mov_b32 s{SK+2}, 262144
        s_mov_b32 s{SK+3}, 0x20000
        v_lshl_add_u32 v3, v11, 9, v14
        s_lshl_b32 s3, s{S_W}, 16
        v_add_u32 v3, s3, v3
        """)
        self.addr['k'] = {'d': 3, 'r': 4}
        while self.can_issue() and self.items[self.ip].a != (2, 0): self.issue()
        g.e(f"""
        v_and_b32 v18, 15, v10
        v_lshrrev_b32 v19, 4, v10
        v_lshrrev_b32 v20, 3, v18
        v_mul_u32_u24 v20, 3, v20
        v_xor_b32 v20, v19, v20
        v_lshl_add_u32 v20, v18, 2, v20
        v_lshlrev_b32 v1, 4, v20
        v_add_u32 v2, 0x10000, v1
        v_add_u32 v4, s{S_RING}, v1
        v_and_b32 v20, 7, v11
        v_lshlrev_b32 v20, 6, v20
        v_lshl_add_u32 v20, v13, 10, v20
        v_xor_b32 v21, v12, v15
        v_lshl_add_u32 v20, v21, 4, v20
        v_and_b32 v21, 1, v12
        v_lshl_add_u32 v20, v21, 3, v20
        v_add_u32 v6, s{S_RING}, v20
        v_xor_b32 v7, 8, v6
        s_and_b32 s3, s{S_W}, 2
        s_lshl_b32 s3, s3, 6
        v_subrev_u32 v9, s3, v8
        s_and_b32 s3, s{S_W}, 1
        s_mul_i32 s{S_XM3}, s3, 7168
        s_add_u32 s{S_XM3}, s{S_XM3}, {3*28672}
        s_lshr_b32 s3, s{S_W}, 1
        s_mul_i32 s3, s3, 3
        s_mul_i32 s{S_X3O}, s3, 14336
        s_add_u32 s{S_X3O}, s{S_X3O}, 768
        s_lshl_b32 s3, s3, 10
        s_add_u32 s{S_XM3}, s{S_XM3}, s3
        s_add_u32 s{SV}, s16, s4
        s_addc_u32 s{SV+1}, s17, 0
        s_and_b32 s{SV+1}, s{SV+1}, 0xffff
        s_mov_b32 s{SV+2}, 262144
        s_mov_b32 s{SV+3}, 0x20000
        s_mul_i32 s3, s6, 229376
        s_add_u32 s{SWO}, s12, s3
        s_addc_u32 s{SWO+1}, s13, 0
        s_and_b32 s{SWO+1}, s{SWO+1}, 0xffff
        s_mov_b32 s{SWO+2}, 229376
        s_mov_b32 s{SWO+3}, 0x20000
        s_mov_b32 s{SWO2}, s{SWO}
        s_mov_b32 s{SWO2+1}, s{SWO+1}
        s_cmp_eq_u32 s{S_W}, 3
        s_cselect_b32 s{SWO2+2}, 0, 229376
        s_mov_b32 s{SWO2+3}, 0x20000
        s_lshl_b32 s3, s7, 3
        s_add_u32 s3, s3, s5
        s_mul_i32 s3, s3, 1605632
        s_add_u32 s{SWS}, s14, s3
        s_addc_u32 s{SWS+1}, s15, 0
        s_and_b32 s{SWS+1}, s{SWS+1}, 0xffff
        s_mov_b32 s{SWS+2}, 1605632
        s_mov_b32 s{SWS+3}, 0x20000
        s_mul_i32 s{S_ST}, s6, 100352
        s_mul_i32 s3, s{S_W}, 28672
        s_add_u32 s{S_ST}, s{S_ST}, s3
        s_mov_b32 s{S_C}, 0x3db8aa3b
        s_mov_b32 s{S_C+1}, 0x3db8aa3b
        """)
        while self.can_issue(): self.issue()
        self.stamp('prologue')

    ACC1 = 16; B1 = 128
    def acc1(self, r, t): return self.ACC1 + (r * 4 + t) * 4
    def x_read(self, s, r):
        off = (s * 7 + r) * 1024; va = 1
        if off >= 65536: off -= 65536; va = 2
        self.xb[(s, r)] = self.bread_(f'ds_read_b128 {vr(self.B1 + 4*r)}, v{va} offset:{off}')
    def wsteps(self, kind, *a): return [self.by[(kind,) + a + (0,)], self.by[(kind,) + a + (1,)]]
    def phase1(self):
        g = self.g; c = self.c
        self.xb = {}
        self.ensure(self.wsteps('wq', 0))
        self.wait_x(0)
        for r in range(7): self.x_read(0, r)
        self.stamp('p1 start')
        for s in range(14):
            mf = []
            for r in range(7):
                for t in range(4):
                    a = self.acc1(r, t)
                    cc = '0' if s == 0 else vr(a)
                    def pre(s=s, r=r, t=t):
                        if r == 0 and t == 0: self.wwait('wq', s)
                        if t == 0: g.wait_lg(self.xb[(s, r)])
                    def txt(s=s, a=a, r=r, t=t, cc=cc):
                        return f'{MF} {vr(a)}, {self.wfrag(("wq", s), t)}, {vr(self.B1 + 4*r)}, {cc}'
                    mf.append((txt, pre))
            fl = []
            if s < 13:
                n = s + 1
                if n % 4 == 0: fl.append((0.1, lambda n=n: self.wait_x(n // 4)))
                for r in range(7): fl.append((4 * r + 3, lambda n=n, r=r: self.x_read(n, r)))
                fl.append((c.look, lambda n=n: self.ensure(self.wsteps('wq', n))))
            for pos in range(28):
                if pos % 4 != 3: fl.append((pos + 0.5, self.tick))
            self.run(mf, fl)
            self.a_release_w(('wq', s))
        self.stamp('p1 end')

    def run(self, mfmas, fillers):
        g = self.g
        fillers = sorted(fillers, key=lambda x: x[0])
        j = 0
        while j < len(fillers) and fillers[j][0] < 0:
            fillers[j][1](); j += 1
        for k, (txt, pre) in enumerate(mfmas):
            if pre: pre()
            g.e(txt() if callable(txt) else txt)
            while j < len(fillers) and fillers[j][0] < k + 1:
                fillers[j][1](); j += 1
        while j < len(fillers):
            fillers[j][1](); j += 1

    def q_write(self):
        g = self.g
        g.e(f"""
        v_bfe_u32 v13, v10, 4, 1
        v_lshl_add_u32 v11, v13, 3, v0
        s_mul_i32 s3, s{S_W}, 14336
        v_add_u32 v11, s3, v11
        v_xor_b32 v12, 8, v11
        """)
        T = 160; k = 0
        for r in range(7):
            for hp in range(2):
                for b in range(2):
                    d = T + 2 * (k % 16); k += 1
                    a = self.acc1(r, 2 * hp + b)
                    g.e(f'v_cvt_pk_bf16_f32 v{d}, v{a}, v{a+1}')
                    g.e(f'v_cvt_pk_bf16_f32 v{d+1}, v{a+2}, v{a+3}')
                    if k > 16: pass
                    g.e(f'ds_write_b64 v{11+b}, {vr(d,2)} offset:{(hp*7 + r)*1024}')
                self.tick()
        assert all(it.parked == 2 for it in self.items if it.kind == 'wq')
        g.e(f"""
        v_lshrrev_b32 v14, 2, v10
        v_and_b32 v14, 7, v14
        v_and_b32 v15, 3, v10
        v_lshrrev_b32 v16, 5, v10
        v_lshlrev_b32 v17, 1, v13
        v_xor_b32 v18, v15, v17
        v_lshlrev_b32 v18, 4, v18
        v_lshl_add_u32 v18, v16, 6, v18
        v_lshl_add_u32 v18, v14, 9, v18
        s_lshl_b32 s3, s{S_W}, 7
        v_add_u32 v5, s3, v18
        v_lshlrev_b32 v18, 6, v14
        v_lshl_add_u32 v18, v16, 10, v18
        v_lshrrev_b32 v19, 1, v15
        v_add_u32 v19, v19, v17
        v_lshl_add_u32 v18, v19, 4, v18
        v_and_b32 v19, 1, v15
        v_lshl_add_u32 v18, v19, 3, v18
        v_add_u32 v6, s{S_RING}, v18
        v_xor_b32 v7, 32, v6
        """)
        self.addr['v'] = {'d': 5, 'r': (6, 7)}
        g.wait_lg_all(); g.barrier()
        self.stamp('q_write')

    SACC = 8; BQ = 232; NBQ = 6
    def sacc(self, r, t): return self.SACC + (r * 8 + t) * 4
    def qk(self):
        g = self.g; c = self.c
        units = [(pi, wp) for pi in range(len(c.passes)) for wp in range(4)]
        def uitems(pi, wp): return [self.by[('k', t, wp)] for t in c.passes[pi]]
        seq = [(pi, ks, r) for pi in range(len(c.passes)) for ks in range(8) for r in range(7)]
        rd = {}
        def bread(f):
            pi, ks, r = seq[f]
            rd[f] = self.bread_(f'ds_read_b128 {vr(self.BQ + 4*(f % self.NBQ))}, v0 offset:{(ks*7 + r)*1024}')
        for f in range(self.NBQ - 1): bread(f)
        self.ensure(uitems(0, 0))
        f = 0
        for ui, (pi, wp) in enumerate(units):
            T = c.passes[pi]; nT = len(T)
            if pi == c.rows01_stop and wp == 0: self.norefill |= {0, 1}
            mf = []; fl = []
            for e in range(2):
                ks = 2 * wp + e
                for r in range(7):
                    for ti, t in enumerate(T):
                        a = self.sacc(r, t)
                        cc = '0' if ks == 0 else vr(a)
                        def pre(f=f, t=t, wp=wp, ti=ti, r=r, e=e):
                            if ti == 0: g.wait_lg(rd[f])
                            if r == 0 and e == 0: g.wait_lg(self.by[('k', t, wp)].rd)
                        def txt(a=a, t=t, wp=wp, e=e, f=f, cc=cc):
                            return f'{MF} {vr(a)}, {ar(self.by[("k", t, wp)].reg + 4*e)}, {vr(self.BQ + 4*(f % self.NBQ))}, {cc}'
                        mf.append((txt, pre))
                    if f + self.NBQ - 1 < len(seq):
                        fl.append((len(mf) - nT + 0.2, lambda f=f: bread(f + self.NBQ - 1)))
                    f += 1
            n = len(mf)
            if ui + 1 < len(units):
                fl.append((n * c.look / 28, lambda u=units[ui + 1]: self.ensure(uitems(*u))))
            for pos in range(n):
                if pos % nT != 0 or nT == 1: fl.append((pos + 0.5, self.tick))
            self.run(mf, fl)
            for t in T: self.a_release_k(t, wp)
        self.stamp('qk end')

    def softmax(self):
        g = self.g; c = self.c
        M = 232; TM = 240
        tk = self.tick
        for r in range(7):
            vals = [self.sacc(r, t) + i for t in range(8) for i in range(4)]
            g.e(f'v_max3_f32 v{M+r}, v{vals[0]}, v{vals[1]}, v{vals[2]}')
            k = 3
            while k + 1 < 32:
                g.e(f'v_max3_f32 v{M+r}, v{M+r}, v{vals[k]}, v{vals[k+1]}'); k += 2
                if k % 8 == 3: tk()
            g.e(f'v_max_f32 v{M+r}, v{M+r}, v{vals[31]}')
        def xreduce(base, tmp, op):
            for r in range(7): g.e(f'v_mov_b32 v{tmp+r}, v{base+r}')
            for r in range(7): g.e(f'v_permlane32_swap_b32 v{base+r}, v{tmp+r}')
            for r in range(7): g.e(f'{op} v{base+r}, v{base+r}, v{tmp+r}')
            tk()
            for r in range(7): g.e(f'v_mov_b32 v{tmp+r}, v{base+r}')
            for r in range(7): g.e(f'v_permlane16_swap_b32 v{base+r}, v{tmp+r}')
            for r in range(7): g.e(f'{op} v{base+r}, v{base+r}, v{tmp+r}')
        xreduce(M, TM, 'v_max_f32')
        g.e(f"""
        v_and_b32 v2, 0xf0, v0
        v_add_u32 v2, {MAXA}, v2
        s_lshl_b32 s3, s{S_W}, 2
        v_add_u32 v1, s3, v2
        s_mov_b64 exec, 0xffff
        """)
        for r in range(7): g.e(f'ds_write_b32 v1, v{M+r} offset:{r*256}')
        g.e('s_mov_b64 exec, -1')
        self.retire_rows([0, 1])
        g.wait_lg_all(); g.barrier()
        rd = {}
        for r in range(7):
            if r >= 4:
                rr = r - 4
                g.wait_lg(rd[rr]); b = TM + 4 * (rr % 4)
                g.e(f'v_max3_f32 v{M+rr}, v{b}, v{b+1}, v{b+2}')
                g.e(f'v_max_f32 v{M+rr}, v{M+rr}, v{b+3}')
            rd[r] = g.op(f'ds_read_b128 {vr(TM + 4*(r % 4))}, v2 offset:{r*256}')
        for rr in range(3, 7):
            g.wait_lg(rd[rr]); b = TM + 4 * (rr % 4)
            g.e(f'v_max3_f32 v{M+rr}, v{b}, v{b+1}, v{b+2}')
            g.e(f'v_max_f32 v{M+rr}, v{M+rr}, v{b+3}')
        for r in range(7): g.e(f'v_mul_f32 v{M+r}, s{S_C}, v{M+r}')
        SUM = 240
        g.e(f"""
        s_mul_i32 s3, s{S_W}, 28672
        v_add_u32 v1, s3, v0
        """)
        for r in range(7):
            for q in range(4):
                t0 = self.sacc(r, 2 * q); t1 = self.sacc(r, 2 * q + 1)
                regs = [t0 + i for i in range(4)] + [t1 + i for i in range(4)]
                for x in regs: g.e(f'v_fma_f32 v{x}, v{x}, s{S_C}, -v{M+r}')
                tk()
                for x in regs: g.e(f'v_exp_f32 v{x}, v{x}')
                tk()
                if q == 0:
                    g.e(f'v_add_f32 v{SUM+r}, v{regs[0]}, v{regs[1]}'); rest = regs[2:]
                else:
                    rest = regs
                for x in rest: g.e(f'v_add_f32 v{SUM+r}, v{SUM+r}, v{x}')
                g.e(f'v_cvt_pk_bf16_f32 v{t0}, v{t0}, v{t0+1}')
                g.e(f'v_cvt_pk_bf16_f32 v{t0+1}, v{t0+2}, v{t0+3}')
                g.e(f'v_cvt_pk_bf16_f32 v{t0+2}, v{t1}, v{t1+1}')
                g.e(f'v_cvt_pk_bf16_f32 v{t0+3}, v{t1+2}, v{t1+3}')
                g.e(f'ds_write_b128 v1, {vr(t0)} offset:{(q*7 + r)*1024}')
                tk()
        TM2 = 248
        xreduce(SUM, TM2, 'v_add_f32')
        g.e(f"""
        v_add_u32 v2, {SUMA - MAXA}, v2
        s_lshl_b32 s3, s{S_W}, 2
        v_add_u32 v1, s3, v2
        s_mov_b64 exec, 0xffff
        """)
        for r in range(7): g.e(f'ds_write_b32 v1, v{SUM+r} offset:{r*256}')
        g.e('s_mov_b64 exec, -1')
        g.e('v_add_u32 v1, 0x10000, v0')
        g.e(f"""
        v_lshrrev_b32 v10, 4, v0
        v_lshrrev_b32 v14, 2, v10
        v_and_b32 v14, 7, v14
        v_and_b32 v15, 3, v10
        v_lshrrev_b32 v16, 5, v10
        v_bfe_u32 v13, v10, 4, 1
        v_xor_b32 v17, v15, v13
        v_lshlrev_b32 v17, 4, v17
        v_lshl_add_u32 v18, v16, 6, v17
        s_movk_i32 s3, 896
        v_mad_u32_u24 v18, v14, s3, v18
        s_lshl_b32 s3, s{S_W}, 8
        v_add_u32 v148, s3, v18
        v_lshlrev_b32 v18, 6, v14
        v_lshl_add_u32 v18, v16, 10, v18
        v_add_u32 v18, v18, v17
        v_and_b32 v19, 1, v15
        v_lshl_add_u32 v18, v19, 3, v18
        v_add_u32 v149, s{S_RING}, v18
        v_xor_b32 v150, 8, v149
        """)
        self.addr['wo'] = {'d': 148, 'r': (149, 150)}
        g.wait_lg_all(); g.barrier()
        self.stamp('softmax end')

    OACC = 8; B3 = 120
    def oacc(self, r, t): return self.OACC + (r * 4 + t) * 4
    def lin_read(self, dst, frag):
        off = frag * 1024; va = 0
        if off >= 65536: off -= 65536; va = 1
        return self.bread_(f'ds_read_b128 {vr(dst)}, v{va} offset:{off}')
    def pv(self):
        g = self.g; c = self.c
        pb = {}
        for r in range(7): pb[(0, r)] = self.lin_read(self.B3 + 4 * r, r)
        self.ensure(self.wsteps('v', 0))
        for u in range(16):
            mf = []; fl = []
            for r in range(7):
                for t in range(4):
                    a = self.oacc(r, t)
                    cc = '0' if u == 0 else vr(a)
                    def pre(u=u, r=r, t=t):
                        if r == 0 and t == 0: self.wwait('v', u)
                        if t == 0: g.wait_lg(pb[(u, r)])
                    def txt(u=u, a=a, r=r, t=t, cc=cc):
                        return f'{MF} {vr(a)}, {self.wfrag(("v", u), t)}, {vr(self.B3 + 4*r)}, {cc}'
                    mf.append((txt, pre))
            if u == 8: fl.append((0.05, lambda: g.barrier()))
            if u < 15:
                n = u + 1
                for r in range(7):
                    def f(n=n, r=r): pb[(n, r)] = self.lin_read(self.B3 + 4 * r, n * 7 + r)
                    fl.append((4 * r + 3, f))
                fl.append((c.look, lambda n=n: self.ensure(self.wsteps('v', n))))
            for pos in range(28):
                if pos % 4 != 3: fl.append((pos + 0.5, self.tick))
            self.run(mf, fl)
            self.a_release_w(('v', u))
        self.stamp('pv end')

    def o_write(self):
        g = self.g
        T = 184
        rd = [g.op(f'ds_read_b128 {vr(T + 4*r)}, v2 offset:{r*256}') for r in range(7)]
        g.e(f"""
        s_mul_i32 s3, s{S_W}, 14336
        v_add_u32 v2, s3, v0
        """)
        for r in range(7):
            g.wait_lg(rd[r]); b = T + 4 * r
            g.e(f'v_add_f32 v{b}, v{b}, v{b+1}')
            g.e(f'v_add_f32 v{b+2}, v{b+2}, v{b+3}')
        for r in range(7):
            b = T + 4 * r
            g.e(f'v_add_f32 v{b}, v{b}, v{b+2}')
        for r in range(7):
            b = T + 4 * r
            g.e(f'v_rcp_f32 v{b}, v{b}')
        P = 212; k = 0
        for r in range(7):
            b = T + 4 * r
            for t in range(4):
                for i in range(4):
                    x = self.oacc(r, t) + i
                    g.e(f'v_mul_f32 v{x}, v{x}, v{b}')
            self.tick()
            for hp in range(2):
                d = P + 4 * (k % 8); k += 1
                a0 = self.oacc(r, 2 * hp); a1 = self.oacc(r, 2 * hp + 1)
                g.e(f'v_cvt_pk_bf16_f32 v{d}, v{a0}, v{a0+1}')
                g.e(f'v_cvt_pk_bf16_f32 v{d+1}, v{a0+2}, v{a0+3}')
                g.e(f'v_cvt_pk_bf16_f32 v{d+2}, v{a1}, v{a1+1}')
                g.e(f'v_cvt_pk_bf16_f32 v{d+3}, v{a1+2}, v{a1+3}')
                g.e(f'ds_write_b128 v2, {vr(d)} offset:{(hp*7 + r)*1024}')
                self.tick()
        g.wait_lg_all(); g.barrier()
        self.stamp('o_write')

    PK = 188
    def out_proj(self):
        g = self.g; c = self.c
        ob = {}
        def group(gam, pending):
            for ks in range(8):
                mf = []; fl = []
                for r in range(7):
                    for t in range(4):
                        a = self.oacc(r, t)
                        cc = '0' if ks == 0 else vr(a)
                        def pre(ks=ks, r=r, t=t):
                            if r == 0 and t == 0: self.wwait('wo', gam, ks)
                            if t == 0: g.wait_lg(ob[(gam, ks, r)])
                        def txt(ks=ks, a=a, r=r, t=t, cc=cc):
                            return f'{MF} {vr(a)}, {self.wfrag(("wo", gam, ks), t)}, {vr(self.B3 + 4*r)}, {cc}'
                        mf.append((txt, pre))
                nxt = None
                if ks < 7: nxt = (gam, ks + 1)
                elif gam == 0: nxt = (1, 0)
                if nxt:
                    ng, nk = nxt
                    for r in range(7):
                        def f(ng=ng, nk=nk, r=r): ob[(ng, nk, r)] = self.lin_read(self.B3 + 4 * r, nk * 7 + r)
                        fl.append((4 * r + 3, f))
                    fl.append((c.look, lambda ng=ng, nk=nk: self.ensure(self.wsteps('wo', ng, nk))))
                if pending:
                    take = pending[:4]; del pending[:4]
                    for pos, f in zip(spread(4, 2.5, 24.5), take): fl.append((pos, f))
                if ks == 7:
                    for r in range(7):
                        fl.append((4 * r + 3 + 6.5, lambda r=r: self.pack(r)))
                for pos in range(28):
                    if pos % 4 != 3: fl.append((pos + 0.5, self.tick))
                self.run(mf, fl)
                self.a_release_w(('wo', gam, ks))
            return [(lambda r=r, h=h: self.store(gam, r, h)) for r in range(7) for h in range(2)]
        for r in range(7): ob[(0, 0, r)] = self.lin_read(self.B3 + 4 * r, r)
        self.ensure(self.wsteps('wo', 0, 0))
        st0 = group(0, [])
        g.e(f's_cmp_eq_u32 s{S_W}, 3')
        g.e('s_cbranch_scc1 L_w3')
        save = (g.vm, g.vm_done, g.lg, g.lg_done, list(g.out_vm), list(g.out_lg), list(g.hist))
        st1 = group(1, st0[:])
        for f in st1: f()
        g.e('s_branch L_done')
        g.label('L_w3')
        g.vm, g.vm_done, g.lg, g.lg_done, g.out_vm, g.out_lg, g.hist = save
        g.e('s_nop 7')
        g.e('s_waitcnt vmcnt(0) lgkmcnt(0)'); g.vm_done = g.vm; g.lg_done = g.lg
        for f in st0: f()
        g.label('L_done')
    def pack(self, r):
        g = self.g
        for h in range(2):
            d = self.PK + (r * 2 + h) * 4
            a0 = self.oacc(r, 2 * h); a1 = self.oacc(r, 2 * h + 1)
            g.e(f'v_cvt_pk_bf16_f32 v{d}, v{a0}, v{a0+1}')
            g.e(f'v_cvt_pk_bf16_f32 v{d+1}, v{a0+2}, v{a0+3}')
            g.e(f'v_cvt_pk_bf16_f32 v{d+2}, v{a1}, v{a1+1}')
            g.e(f'v_cvt_pk_bf16_f32 v{d+3}, v{a1+2}, v{a1+3}')
    def store(self, gam, r, h):
        g = self.g; c = self.c
        unit = gam * 14 + r * 2 + h
        d = self.PK + (r * 2 + h) * 4
        off = unit * 1024
        g.e(f's_add_u32 s{S_T}, s{S_ST}, {off & ~0xfff}')
        g.op(f'buffer_store_dwordx4 {vr(d)}, v0, {srd(SWS)}, s{S_T} offen offset:{off & 0xfff}{c.st_part}')

    def epilogue(self):
        g = self.g; c = self.c
        if c.stamps:
            g.e('s_waitcnt vmcnt(0) lgkmcnt(0)')
            g.vm_done = g.vm; g.lg_done = g.lg
            self.stamp('end')
            n = self.nst
            g.e(f"""
            s_cmp_lg_u32 s{S_W}, 0
            s_cbranch_scc1 L_exit
            s_mov_b32 s4, s14
            s_and_b32 s5, s15, 0xffff
            s_mov_b32 s6, 0x10000000
            s_mov_b32 s7, 0x20000
            s_mul_i32 s3, s2, {8*n}
            s_add_u32 s3, s3, {200<<20}
            v_mov_b32 v2, 0
            s_mov_b64 exec, 1
            """)
            for k in range(n):
                g.e(f'v_mov_b32 v4, s{S_STAMP+2*k}')
                g.e(f'v_mov_b32 v5, s{S_STAMP+2*k+1}')
                g.e(f'buffer_store_dwordx2 v[4:5], v2, s[4:7], s3 offen offset:{8*k}')
                g.e('s_waitcnt vmcnt(0)'); g.vm_done = g.vm
        else:
            self.log.append(('end', g.t, self.ip, self.pp))
        g.check = False
        g.label('L_exit')
        g.e('s_endpgm')

    def main_kernel(self):
        self.prologue()
        self.phase1()
        self.q_write()
        self.qk()
        self.softmax()
        self.pv()
        self.o_write()
        self.out_proj()
        self.epilogue()
        return self.g.text()

def reduce_kernel():
    g = Emit()
    g.e(f"""
    v_lshrrev_b32 v1, 6, v0
    v_and_b32 v0, 63, v0
    s_load_dwordx2 s[4:5], s[0:1], 80
    s_load_dwordx2 s[6:7], s[0:1], 96
    v_readfirstlane_b32 s8, v1
    s_lshl_b32 s9, s2, 2
    s_add_u32 s9, s9, s8
    s_cmp_ge_u32 s9, 1568
    s_cbranch_scc1 L_rexit
    s_mul_i32 s10, s9, 669
    s_lshr_b32 s10, s10, 16
    s_mul_i32 s11, s10, 98
    s_sub_u32 s11, s9, s11
    s_mul_i32 s12, s10, 1605632
    s_lshl_b32 s13, s11, 10
    v_lshlrev_b32 v2, 4, v0
    s_waitcnt lgkmcnt(0)
    s_add_u32 s16, s6, s12
    s_addc_u32 s17, s7, 0
    s_and_b32 s17, s17, 0xffff
    s_mov_b32 s18, 1605632
    s_mov_b32 s19, 0x20000
    """)
    for h in range(16):
        g.e(f's_add_u32 s14, s13, {h*100352}')
        g.op(f'buffer_load_dwordx4 {vr(16 + 4*h)}, v2, s[16:19], s14 offen')
    g.e(f"""
    s_lshr_b32 s20, s11, 1
    s_mul_i32 s21, s20, 37
    s_lshr_b32 s21, s21, 8
    s_mul_i32 s22, s21, 7
    s_sub_u32 s22, s20, s22
    s_and_b32 s23, s11, 1
    s_lshr_b32 s24, s10, 3
    s_and_b32 s25, s10, 7
    s_mul_i32 s26, s25, 112
    s_lshl_b32 s27, s22, 4
    s_add_u32 s26, s26, s27
    s_mul_i32 s26, s26, 1792
    s_mul_i32 s27, s24, 896
    s_add_u32 s26, s26, s27
    s_lshl_b32 s27, s21, 7
    s_add_u32 s26, s26, s27
    s_lshl_b32 s27, s23, 6
    s_add_u32 s26, s26, s27
    v_and_b32 v3, 15, v0
    v_mul_u32_u24 v3, 1792, v3
    v_lshrrev_b32 v4, 4, v0
    v_lshl_add_u32 v3, v4, 4, v3
    v_and_b32 v4, 16, v0
    v_cmp_ne_u32 vcc, 0, v4
    s_mov_b32 s28, s4
    s_and_b32 s29, s5, 0xffff
    s_mov_b32 s30, 1605632
    s_mov_b32 s31, 0x20000
    s_mov_b32 s32, 0xffff0000
    """)
    for h in range(16):
        g.wait_vm(h)
        for k in range(4):
            x = 16 + 4 * h + k
            if h == 0:
                g.e(f'v_lshlrev_b32 v{8+2*k}, 16, v{x}')
                g.e(f'v_and_b32 v{9+2*k}, s32, v{x}')
            else:
                g.e(f'v_lshlrev_b32 v5, 16, v{x}')
                g.e(f'v_and_b32 v6, s32, v{x}')
                g.e(f'v_add_f32 v{8+2*k}, v{8+2*k}, v5')
                g.e(f'v_add_f32 v{9+2*k}, v{9+2*k}, v6')
    for k in range(4):
        g.e(f'v_cvt_pk_bf16_f32 v{80+k}, v{8+2*k}, v{9+2*k}')
    g.e("""
    v_cndmask_b32 v84, v80, v82, vcc
    v_cndmask_b32 v85, v81, v83, vcc
    v_cndmask_b32 v86, v82, v80, vcc
    v_cndmask_b32 v87, v83, v81, vcc
    """)
    g.op('buffer_store_dwordx4 v[84:87], v3, s[28:31], s26 offen')
    g.label('L_rexit')
    g.e('s_endpgm')
    return g.text()

def build(cfg):
    G = Gen(cfg)
    body = G.main_kernel()
    red = reduce_kernel()
    name = 'attn_main_kernel'
    txt = make_file([(name, 256, 256, LDS_BYTES), ('head_reduce_kernel', 392, 256, 0)],
                    [(name, body, 512, 102, 256), ('head_reduce_kernel', red, 96, 40, 96)])
    return txt, G

if __name__ == '__main__':
    ap = argparse.ArgumentParser()
    ap.add_argument('-o', default='f2.s')
    ap.add_argument('--stamps', action='store_true')
    ap.add_argument('--set', action='append', default=[])
    a = ap.parse_args()
    cfg = Cfg()
    cfg.stamps = a.stamps
    for kv in a.set:
        k, v = kv.split('=', 1)
        setattr(cfg, k, eval(v))
    txt, G = build(cfg)
    open(a.o, 'w').write(txt)
    print('instr', G.g.ninstr, 'nops', G.g.nops, 'stamps', G.nst, 'bytes', len(txt))
    for nm, t, ip, pp in G.log: print('   %-12s t=%6.2fus issued=%d parked=%d' % (nm, t / 2000, ip, pp))
```

```python
import sys, argparse, re
sys.path.insert(0, 'tools')
from emit import *
from gen_common import make_file

class Cfg:
    stamps = False
    passes = [[0, 1], [2, 3], [4, 5], [6, 7]]
    nt_k = ' nt'; nt_v = ' nt'; nt_wq = ''; nt_x = ''; nt_wo = ''
    st_part = ''
    lat0 = 3000
    lat = 2000
    lat_w = 1000
    d_kv = 400
    d_w = 100
    delay = 100
    look = 12
    maxn = 3; maxb = 16
    touch_wq = True; touch_wo = True
    touch_wo_at = 20
    k_start = 28
    k_mix = 1
    lrows_p1 = True
    lrows_pv = True
    l_a = 4; l_b = 8
    stop_unit = 11
    age = 160
    no_dma = ()
    no_park = ()
    no_b = False
    pstamps = False

RING0 = 100352
QBASE = 43008
OBASE = 57344
MAXA = 157696
SUMA = 159744
SCR = 161792
LDS_BYTES = 163840

SX, SK, SK2, SV, SV2, SWQ, SWQ2, SWS = 20, 24, 28, 32, 36, 40, 44, 48
SWO, SWOb = 40, 44
SWO2, SWO2b = 24, 28
S_ROW = 52
S_W = 66; S_SCR = 67
S_C = 68
S_OK = 70; S_OV = 71
S_STAMP = 72
S_OW = 92; S_C32K = 93; S_C224K = 94; S_XM = 95
S_WOP = 96
S_XM3 = 98; S_X3O = 99; S_OFF = 100
S_ST = 18; S_T = 19

def srd(b): return f's[{b}:{b+3}]'
def vr(b, n=4): return f'v[{b}:{b+n-1}]'
def ar(b, n=4): return f'a[{b}:{b+n-1}]'
MF = 'v_mfma_f32_16x16x32_bf16'

LIT = re.compile(r'(?<![\w\[:])(0x[0-9a-fA-F]+|-?\d+)(?![\w\]:])')
def isize(l):
    sp = l.split(None, 1); op = sp[0]; rest = sp[1] if len(sp) > 1 else ''
    if op.startswith(('v_mfma', 'ds_', 'buffer_', 'global_', 's_load', 's_memrealtime')): return 8
    if op.startswith(('s_waitcnt', 's_nop', 's_barrier', 's_movk', 's_addk', 's_cbranch', 's_branch', 's_endpgm')): return 4
    ops = split_ops(rest)
    lit = False
    for o in ops:
        o = o.split()[0] if o.split() else o
        if re.fullmatch(r'0x[0-9a-fA-F]+|-?\d+', o):
            v = int(o, 0)
            if not (-16 <= v <= 64): lit = True
    if op.startswith('s_'): return 8 if lit else 4
    v3 = op.startswith(('v_fma', 'v_max3', 'v_mad', 'v_lshl_add', 'v_add3', 'v_cvt_pk', 'v_pk_', 'v_bfe', 'v_mul_lo', 'v_perm_', 'v_permlane', 'v_lshl_or', 'v_and_or', 'v_or3', 'v_readfirstlane_x'))
    if v3: return 8
    return 8 if lit else 4

class TEmit(Emit):
    def __init__(self):
        super().__init__()
        self.t = 0; self.tm = -100
        self.lg_time = {}
        self.gn = 0; self.gb = 0; self.gm = 0
        self.nbytes = 0
    def newgap(self): self.gn = 0; self.gb = 0; self.gm = 0
    def wait_lg_lazy(self, idx, age=160):
        if idx is None or idx < 0 or idx < self.lg_done: return
        j = idx
        while j + 1 < self.lg and self.t - self.lg_time[j + 1] >= age: j += 1
        self.wait_lg(j)
    def _e(self, l):
        r = super()._e(l)
        i = self.hist[-1]
        sz = isize(l.split(';')[0].strip())
        self.nbytes += sz
        if i.cls in ('dsr', 'dsw'): self.lg_time[r] = self.t
        if i.cls == 'mfma':
            self.t = max(self.t, self.tm + 16); self.tm = self.t; self.t += 8
            self.newgap()
        else:
            self.gn += 1; self.gb += sz
            if i.cls in ('dsr', 'dsw', 'vml', 'vms'): self.gm += 1
            if i.cls == 'trans': self.t += 8
            elif i.cls in ('valu', 'permlane'): self.t += 4
            else: self.t += 2
        return r

class Row:
    def __init__(s, name, base, sreg, low):
        s.name = name; s.base = base; s.sreg = sreg; s.low = low
        s.avail = False
        s.busy = False
        s.prev = None
    def __repr__(s): return s.name

class Item:
    def __init__(s, kind, *a):
        s.kind = kind; s.a = a
        s.done = 0; s.pm0 = False; s.pso = False
        s.vm = None; s.arr = None; s.row = None
        s.parked = 0; s.rd = None; s.reg = None; s.tpark = None; s.idx = None
    def np(s): return 1 if s.kind in ('x', 'touch') else 2
    def nrd(s): return {'k': 2, 'x': 0, 'touch': 0}.get(s.kind, 4)
    def pdone(s): return s.done == s.np() and s.parked == s.nrd()
    def __repr__(s): return f'{s.kind}{s.a}'

class Gen:
    def __init__(self, cfg):
        self.c = cfg
        self.g = TEmit()
        self.nst = 0
        self.log = []
        self.trace = []

    def stamp(self, name=''):
        self.log.append((name, self.g.t, self.ip, self.pp, self.g.nbytes))
        if not self.c.stamps: return
        if self.c.pstamps != name.startswith('P') and name not in ('end', 'prologue', 'p1 start', 'p1 end') : return
        if self.nst >= 10: return
        g = self.g
        k = S_STAMP + 2 * self.nst
        g.e(f's_memrealtime s[{k}:{k+1}]')
        g.e('s_waitcnt lgkmcnt(0)')
        g.lg_done = g.lg
        self.nst += 1

    def build_order(self):
        c = self.c
        korder = []
        for T in c.passes:
            for wp in range(4):
                for t in T: korder.append(Item('k', t, wp))
        o = []
        def X(jj):
            n = 7 if jj < 3 else 4
            for r in range(n): o.append(Item('x', jj, r))
        wq = [Item('wq', s, h) for s in range(14) for h in range(2)]
        X(0); o += wq[0:2]
        if c.touch_wq: o.append(Item('touch', 'wq'))
        o += wq[2:4]; X(1); o += wq[4:7]; X(2); X(3)
        rest = wq[7:]
        kq = list(korder); nk = 0
        def pushk():
            nonlocal nk
            o.append(kq.pop(0)); nk += 1
            if c.touch_wo and nk == c.touch_wo_at: o.append(Item('touch', 'wo'))
        n = 7
        for it in rest:
            o.append(it); n += 1
            if n >= c.k_start:
                for _ in range(c.k_mix):
                    if kq: pushk()
        while kq: pushk()
        for u in range(16):
            for h in range(2): o.append(Item('v', u, h))
        for gam in range(2):
            for i in range(8):
                for h in range(2): o.append(Item('wo', gam, i, h))
        for i, it in enumerate(o): it.idx = i
        self.items = o
        self.by = {(it.kind,) + it.a: it for it in o}
        self.ip = 0; self.pp = 0
        self.rows = [Row(f'R{k}', RING0 + 8192 * k, S_ROW + k, False) for k in range(7)] + \
                    [Row(f'L{k}', 8192 * k, S_ROW + 7 + k, True) for k in range(7)]
        self.R = self.rows[:7]; self.L = self.rows[7:]
        for r in self.R: r.avail = True
        self.afree = [True] * 32
        self.blk = {}
        self.last_arr = {'kv': 0, 'w': 0}
        self.t0 = None
        self.addr = {}
        self.cur = None
        self.must = 0
        self.off = {}
        self.stalls = []

    def a_alloc(self, it):
        if it.kind == 'k':
            cand = [u for u in range(32) if self.afree[u] and not self.afree[u ^ 1]]
            if not cand: cand = [u for u in range(32) if self.afree[u]]
            if not cand: return None
            u = cand[0]; self.afree[u] = False
            return 8 * u
        key = (it.kind,) + it.a[:-1]
        if key in self.blk: return self.blk[key]
        for u in range(0, 32, 2):
            if self.afree[u] and self.afree[u + 1]:
                self.afree[u] = self.afree[u + 1] = False
                self.blk[key] = 8 * u
                return 8 * u
        return None
    def a_can(self, it):
        if it.reg is not None: return True
        if it.kind == 'k': return any(self.afree)
        key = (it.kind,) + it.a[:-1]
        if key in self.blk: return True
        return any(self.afree[u] and self.afree[u + 1] for u in range(0, 32, 2))
    def a_release_k(self, t, wp): self.afree[self.by[('k', t, wp)].reg // 8] = True
    def a_release_w(self, key):
        b = self.blk[key]; self.afree[b // 8] = self.afree[b // 8 + 1] = True

    def free_row(self, it, force):
        g = self.g; best = None
        lowok = 'rl' in self.addr[it.kind]
        for r in self.rows:
            if r.busy or not r.avail or (r.low and not lowok): continue
            p = r.prev
            if p is None or p.rd is None or p.rd < g.lg_done: return r
            if force or g.t - p.tpark >= self.c.delay:
                if best is None or p.tpark < best.prev.tpark: best = r
        return best
    def next_issue(self):
        if self.ip >= len(self.items): return None
        it = self.items[self.ip]
        k = it.kind if it.kind != 'touch' else 'touch_' + it.a[0]
        if k not in self.addr:
            if k == 'touch_wo' and self.ip + 1 < len(self.items):
                nx = self.items[self.ip + 1]
                self.items[self.ip], self.items[self.ip + 1] = nx, it
                nx.idx, it.idx = self.ip, self.ip + 1
                return self.next_issue()
            return None
        return it
    def off_of(self, it):
        if it.kind == 'k': t, wp = it.a; return t * 8192 + wp * 128
        if it.kind == 'wq': st, h = it.a; return (32 * st + 4 * h) * 8192
        if it.kind == 'v': u, h = it.a; return (32 * u + 16 * h) * 512
        if it.kind == 'wo': gam, i, h = it.a; return (32 * i + 16 * h) * 896 + 128 * gam
    SOFF = {'k': S_OK, 'wq': S_OW, 'v': S_OV, 'wo': S_OW}
    def emit_soff(self, it):
        g = self.g
        new = self.off_of(it); s = self.SOFF[it.kind]
        old = self.off.get(it.kind)
        if old is None: g.e(f's_mov_b32 s{s}, {new}' if new > 64 else f's_mov_b32 s{s}, {new}')
        else:
            d = new - old
            if d == 0: pass
            elif -32768 <= d <= 32767: g.e(f's_addk_i32 s{s}, {d}')
            elif it.kind == 'wq' and d == 32768: g.e(f's_add_u32 s{s}, s{s}, s{S_C32K}')
            elif it.kind == 'wq' and d == 229376: g.e(f's_add_u32 s{s}, s{s}, s{S_C224K}')
            else: g.e(f's_mov_b32 s{s}, {new}')
        self.off[it.kind] = new
    def start_issue(self, it, force=False):
        if it.kind in ('touch',):
            self.cur = it; return True
        r = self.free_row(it, force)
        if r is None: return False
        p = r.prev
        if p is not None: self.g.wait_lg_lazy(p.rd, self.c.age)
        it.row = r; r.busy = True
        self.cur = it
        return True
    def finish_issue(self, it):
        g = self.g; c = self.c
        if self.t0 is None: self.t0 = g.t
        cls = 'kv' if it.kind in ('k', 'v') else 'w'
        lat = c.lat if cls == 'kv' else c.lat_w
        d = {'k': c.d_kv, 'v': c.d_kv, 'x': c.d_w / 2, 'touch': 0}.get(it.kind, c.d_w)
        lat = max(lat, self.t0 + c.lat0 - g.t)
        prev = max(self.last_arr.values())
        it.arr = max(g.t + lat, self.last_arr[cls] + d, prev)
        self.last_arr[cls] = it.arr
        it.tissue = g.t
        self.ip += 1
        self.cur = None
    def step_issue(self, memok):
        g = self.g; c = self.c; it = self.cur
        if it.kind == 'touch':
            if not it.pm0:
                g.e(f's_mov_b32 m0, s{S_SCR}'); it.pm0 = True; return True
            if not memok: return False
            A = self.addr['touch_' + it.a[0]]
            it.vm = self.dma(it.kind, f'buffer_load_dword v{A["d"]}, {srd(A["s"])}, 0 offen lds')
            it.done = 1; self.finish_issue(it); return True
        if not it.pm0:
            g.e(f's_mov_b32 m0, s{it.row.sreg}'); it.pm0 = True; return True
        if not it.pso:
            n0 = g.ninstr
            self.emit_soff(it); it.pso = True
            if g.ninstr != n0: return True
        if not memok: return False
        e = it.done
        if it.kind == 'k': s = (SK, SK2)[e]; nt = c.nt_k
        elif it.kind == 'wq': s = (SWQ, SWQ2)[e]; nt = c.nt_wq
        elif it.kind == 'v': s = (SV, SV2)[e]; nt = c.nt_v
        else:
            s = ((SWO, SWOb), (SWO2, SWO2b))[it.a[0]][e]; nt = c.nt_wo
        o = ' offset:1024' if e else ''
        it.vm = self.dma(it.kind, f'buffer_load_dwordx4 v{self.addr[it.kind]["d"]}, {srd(s)}, s{self.SOFF[it.kind]} offen{o}{nt} lds')
        it.done += 1
        if it.done == 2: self.finish_issue(it)
        return True
    def issue_x(self, it):
        g = self.g; c = self.c
        jj, r = it.a
        if jj < 3:
            g.e(f's_add_u32 m0, s{S_XM}, {jj*28672 + r*1024}')
            off = r * 14336 + jj * 256
            if off == 0: so = '0'
            else: g.e(f's_mov_b32 s{S_OFF}, {off}'); so = f's{S_OFF}'
            it.vm = self.dma('x', f'buffer_load_dwordx4 v{self.addr["x"]}, {srd(SX)}, {so} offen{c.nt_x} lds')
        else:
            g.e(f's_add_u32 m0, s{S_XM3}, {r*1024}')
            g.e(f's_add_u32 s{S_OFF}, s{S_X3O}, {r*14336}')
            it.vm = self.dma('x', f'buffer_load_dwordx4 v{self.addr["x3"]}, {srd(SX)}, s{S_OFF} offen{c.nt_x} lds')
        it.done = 1
        self.finish_issue(it)
    def dma(self, kind, txt):
        if kind in self.c.no_dma: return None
        return self.g.op(txt)
    def rdl(self, kind, txt):
        if kind in self.c.no_park: return -1
        return self.g.op(txt)
    def bread_(self, txt):
        if self.c.no_b: return None
        return self.g.op(txt)
    def park_head(self):
        while self.pp < len(self.items) and self.items[self.pp].nrd() == 0 and self.items[self.pp].done: self.pp += 1
        if self.pp >= len(self.items): return None
        it = self.items[self.pp]
        if it.done < it.np() or it.nrd() == 0: return None
        return it
    def park_wait(self, it):
        g = self.g
        g.wait_vm(it.vm)
        if it.arr > g.t:
            self.stalls.append((it, g.t, it.arr - g.t)); g.t = it.arr
        it.reg = self.a_alloc(it)
        assert it.reg is not None, ('no AGPR space', it)
    def park_read(self, it):
        g = self.g
        if it.reg is None: self.park_wait(it)
        A = self.addr[it.kind]
        row = it.row
        if row.low: R = A['rl']; ro = row.base
        else: R = A['r']; ro = row.base - RING0
        k = it.parked
        if it.kind == 'k':
            it.rd = self.rdl(it.kind, f'ds_read_b128 {ar(it.reg + 4*k)}, v{R} offset:{ro + k*1024}')
        else:
            h = it.a[-1]
            it.rd = self.rdl(it.kind, f'ds_read_b64_tr_b16 {ar(it.reg + 4*k + 2*h, 2)}, v{R[k & 1]} offset:{ro + (k >> 1)*512}')
        it.parked += 1
        if it.parked == it.nrd():
            it.tpark = g.t
            row.prev = it; row.busy = False
            self.pp += 1
    def tick(self, fresh=False):
        g = self.g; c = self.c
        if fresh: g.newgap()
        while g.gn < c.maxn and g.gb < c.maxb:
            memok = g.gm == 0 and g.gb + 8 <= c.maxb
            if self.cur is not None:
                if self.step_issue(memok): continue
            ph = self.park_head()
            if ph is not None and ph.reg is not None:
                if memok: self.park_read(ph); continue
            if self.cur is None:
                it = self.next_issue()
                if it is not None and it.kind != 'x' and self.start_issue(it): continue
            if ph is not None and ph.reg is None and (ph.arr <= g.t or ph.idx < self.must) and self.a_can(ph):
                self.park_wait(ph); continue
            break
    def need(self, its):
        self.must = max(self.must, max(x.idx for x in its) + 1)
    def force_step(self):
        it = self.park_head()
        if self.cur is not None: self.step_issue(True); return
        if it is not None and it.reg is not None: self.park_read(it); return
        n = self.next_issue()
        if n is not None:
            if n.kind == 'x': self.issue_x(n); return
            if self.start_issue(n): return
        if it is not None and self.a_can(it): self.park_read(it); return
        if n is not None and self.start_issue(n, force=True): return
        raise RuntimeError(f'stream deadlock: head {it} next {n} afree {sum(self.afree)}')
    def ensure(self, its):
        for x in its:
            while not x.pdone(): self.force_step()
    def ensure_issued(self, x):
        while x.done < x.np(): self.force_step()
    def wait_x(self, jj):
        n = 7 if jj < 3 else 4
        it = self.by[('x', jj, n - 1)]
        self.ensure_issued(it)
        self.g.wait_vm(it.vm); self.g.t = max(self.g.t, it.arr)
    def retire_rows(self, rows):
        for r in rows: r.avail = False
        while any(r.busy for r in rows): self.force_step()
        for r in rows:
            if r.prev is not None: self.g.wait_lg(r.prev.rd)
    def wfrag(self, key, t): return ar(self.blk[key] + 4 * t)
    def wwait(self, kind, *a):
        self.g.wait_lg_lazy(self.by[(kind,) + a + (1,)].rd, self.c.age)
    def run(self, mfmas, fillers):
        g = self.g
        fillers = sorted(fillers, key=lambda x: x[0])
        j = 0
        while j < len(fillers) and fillers[j][0] < 0:
            fillers[j][1](); j += 1
        for k, (txt, pre) in enumerate(mfmas):
            if pre: pre()
            g.e(txt() if callable(txt) else txt)
            while j < len(fillers) and fillers[j][0] < k + 1:
                fillers[j][1](); j += 1
            self.tick()
        while j < len(fillers):
            fillers[j][1](); j += 1

    def prologue(self):
        g = self.g; c = self.c
        self.build_order()
        g.e(f"""
        s_cmp_ge_u32 s2, 256
        s_cbranch_scc1 L_exit
        s_lshr_b32 s5, s2, 3
        s_lshr_b32 s7, s5, 1
        s_and_b32 s7, s7, 1
        s_mul_i32 s3, s7, 40
        s_load_dwordx2 s[14:15], s[0:1], 96
        s_add_u32 s0, s0, s3
        s_addc_u32 s1, s1, 0
        s_load_dwordx4 s[8:11], s[0:1], 0
        s_load_dwordx4 s[{S_ROW}:{S_ROW+3}], s[0:1], 16
        s_load_dwordx2 s[{S_WOP}:{S_WOP+1}], s[0:1], 32
        """)
        if c.stamps:
            g.e(f's_memrealtime s[{S_STAMP}:{S_STAMP+1}]'); self.nst = 1
        g.e(f"""
        v_lshrrev_b32 v1, 6, v0
        v_and_b32 v10, 63, v0
        s_and_b32 s4, s2, 7
        s_and_b32 s6, s5, 1
        v_readfirstlane_b32 s{S_W}, v1
        s_lshr_b32 s5, s5, 2
        s_lshl_b32 s3, s4, 1
        s_add_u32 s6, s3, s6
        v_lshlrev_b32 v0, 4, v10
        v_lshrrev_b32 v11, 2, v10
        v_and_b32 v12, 3, v10
        v_lshrrev_b32 v13, 5, v10
        v_mul_u32_u24 v14, 3, v13
        v_xor_b32 v14, v12, v14
        v_lshlrev_b32 v14, 4, v14
        s_movk_i32 s3, 896
        v_mad_u32_u24 v8, v11, s3, v14
        s_lshl_b32 s3, s{S_W}, 6
        v_add_u32 v8, s3, v8
        s_mul_i32 s{S_XM}, s{S_W}, 7168
        s_mul_i32 s3, s5, 100352
        s_lshl_b32 s{S_T}, s6, 9
        s_waitcnt lgkmcnt(0)
        s_add_u32 s{SX}, s8, s3
        s_addc_u32 s{SX+1}, s9, 0
        s_and_b32 s{SX+1}, s{SX+1}, 0xffff
        s_mov_b32 s{SX+2}, 100352
        s_mov_b32 s{SX+3}, 0x20000
        """)
        g.lg_done = g.lg
        self.addr['x'] = 8
        self.stamp('P kernarg')
        while self.items[self.ip].kind == 'x': self.issue_x(self.items[self.ip])
        self.stamp('P x0')
        g.e(f"""
        s_add_u32 s{SWQ}, s{S_ROW+2}, s{S_T}
        s_addc_u32 s{SWQ+1}, s{S_ROW+3}, 0
        s_and_b32 s{SWQ+1}, s{SWQ+1}, 0xffff
        s_sub_u32 s{SWQ+2}, {448*8192}, s{S_T}
        s_mov_b32 s{SWQ+3}, 0x20000
        s_add_u32 s{SWQ2}, s{SWQ}, {131072 - 1024}
        s_addc_u32 s{SWQ2+1}, s{SWQ+1}, 0
        s_sub_u32 s{SWQ2+2}, s{SWQ+2}, {131072 - 1024}
        s_mov_b32 s{SWQ2+3}, 0x20000
        s_mov_b32 s16, s{S_ROW}
        s_mov_b32 s17, s{S_ROW+1}
        v_bfe_u32 v15, v10, 4, 1
        v_and_b32 v16, 3, v11
        v_lshl_add_u32 v16, v15, 3, v16
        v_lshlrev_b32 v16, 13, v16
        v_xor_b32 v17, v12, v15
        v_lshlrev_b32 v17, 4, v17
        v_lshl_add_u32 v17, v13, 6, v17
        s_lshl_b32 s3, s{S_W}, 7
        v_add3_u32 v5, v16, v17, s3
        s_lshl_b32 s3, s{S_W}, 11
        s_add_u32 s{S_ROW}, s3, {RING0}
        s_movk_i32 s{S_OFF}, 0x2000
        """)
        for k in range(1, 7): g.e(f's_add_u32 s{S_ROW+k}, s{S_ROW+k-1}, s{S_OFF}')
        g.e(f"""
        s_mov_b32 s{S_C32K}, 32768
        s_mov_b32 s{S_C224K}, 229376
        """)
        self.addr['wq'] = {'d': 5, 'r': (6, 7)}
        def pump(stop):
            while True:
                it = self.cur or self.next_issue()
                if it is None or stop(it): return
                if it.kind == 'x': self.issue_x(it)
                elif self.cur is None:
                    if not self.start_issue(it): return
                else: self.step_issue(True)
        pump(lambda it: it.kind not in ('wq',))
        self.stamp('P wq0')
        if c.touch_wq:
            g.e(f"""
            s_mul_i32 s3, s5, 56
            s_mul_i32 s{S_SCR}, s{S_W}, 14
            s_add_u32 s3, s3, s{S_SCR}
            v_min_u32 v18, 13, v11
            v_add_u32 v18, s3, v18
            v_lshlrev_b32 v18, 13, v18
            v_lshl_add_u32 v157, v12, 7, v18
            s_lshl_b32 s{S_SCR}, s{S_W}, 8
            s_add_u32 s{S_SCR}, s{S_SCR}, {SCR}
            """)
            self.addr['touch_wq'] = {'d': 157, 's': SWQ}
        else:
            g.e(f's_lshl_b32 s{S_SCR}, s{S_W}, 8\ns_add_u32 s{S_SCR}, s{S_SCR}, {SCR}')
        g.e(f"""
        s_and_b32 s3, s{S_W}, 2
        s_lshl_b32 s3, s3, 6
        v_subrev_u32 v9, s3, v8
        s_and_b32 s3, s{S_W}, 1
        s_mul_i32 s{S_XM3}, s3, 7168
        s_add_u32 s{S_XM3}, s{S_XM3}, {3*28672}
        s_lshr_b32 s3, s{S_W}, 1
        s_mul_i32 s3, s3, 3
        s_mul_i32 s{S_X3O}, s3, 14336
        s_add_u32 s{S_X3O}, s{S_X3O}, 768
        s_lshl_b32 s3, s3, 10
        s_add_u32 s{S_XM3}, s{S_XM3}, s3
        """)
        self.addr['x3'] = 9
        pump(lambda it: it.kind == 'x')
        self.stamp('P touch+wq1')
        pump(lambda it: it.kind == 'wq')
        self.stamp('P x1')
        pump(lambda it: it.kind == 'k')
        g.e(f"""
        s_lshr_b32 s3, s6, 1
        s_cmp_eq_u32 s7, 0
        s_cselect_b32 s3, s3, s6
        s_cselect_b32 s4, 8, 16
        s_mul_i32 s4, s4, s5
        s_add_u32 s4, s4, s3
        s_lshl_b32 s4, s4, 18
        s_add_u32 s{SK}, s10, s4
        s_addc_u32 s{SK+1}, s11, 0
        s_and_b32 s{SK+1}, s{SK+1}, 0xffff
        s_mov_b32 s{SK+2}, 262144
        s_mov_b32 s{SK+3}, 0x20000
        s_sub_u32 s{SK2}, s{SK}, {1024 - 64}
        s_subb_u32 s{SK2+1}, s{SK+1}, 0
        s_mov_b32 s{SK2+2}, {262144 + 1024 - 64}
        s_mov_b32 s{SK2+3}, 0x20000
        v_lshl_add_u32 v3, v11, 9, v14
        s_lshl_b32 s3, s{S_W}, 16
        v_add_u32 v3, s3, v3
        v_and_b32 v18, 15, v10
        v_lshrrev_b32 v19, 4, v10
        v_lshrrev_b32 v20, 3, v18
        v_mul_u32_u24 v20, 3, v20
        v_xor_b32 v20, v19, v20
        v_lshl_add_u32 v20, v18, 2, v20
        v_lshlrev_b32 v1, 4, v20
        v_add_u32 v2, 0x10000, v1
        v_add_u32 v4, s{S_ROW}, v1
        s_lshl_b32 s3, s{S_W}, 11
        v_add_u32 v156, s3, v1
        s_mov_b32 s{S_ROW+7}, s3
        s_movk_i32 s{S_OFF}, 0x2000
        """)
        for k in range(8, 14): g.e(f's_add_u32 s{S_ROW+k}, s{S_ROW+k-1}, s{S_OFF}')
        self.addr['k'] = {'d': 3, 'r': 4}
        if c.lrows_p1: self.addr['k']['rl'] = 156
        g.e(f"""
        v_and_b32 v20, 7, v11
        v_lshlrev_b32 v20, 6, v20
        v_lshl_add_u32 v20, v13, 10, v20
        v_xor_b32 v21, v12, v15
        v_lshl_add_u32 v20, v21, 4, v20
        v_and_b32 v21, 1, v12
        v_lshl_add_u32 v20, v21, 3, v20
        v_add_u32 v6, s{S_ROW}, v20
        v_xor_b32 v7, 8, v6
        s_add_u32 s{SV}, s16, s4
        s_addc_u32 s{SV+1}, s17, 0
        s_and_b32 s{SV+1}, s{SV+1}, 0xffff
        s_mov_b32 s{SV+2}, 262144
        s_mov_b32 s{SV+3}, 0x20000
        s_add_u32 s{SV2}, s{SV}, {4096 - 1024}
        s_addc_u32 s{SV2+1}, s{SV+1}, 0
        s_mov_b32 s{SV2+2}, {262144 - 4096 + 1024}
        s_mov_b32 s{SV2+3}, 0x20000
        s_lshl_b32 s3, s7, 3
        s_add_u32 s3, s3, s5
        s_mul_i32 s3, s3, 1605632
        s_add_u32 s{SWS}, s14, s3
        s_addc_u32 s{SWS+1}, s15, 0
        s_and_b32 s{SWS+1}, s{SWS+1}, 0xffff
        s_mov_b32 s{SWS+2}, 1605632
        s_mov_b32 s{SWS+3}, 0x20000
        s_mul_i32 s{S_ST}, s6, 100352
        s_mul_i32 s3, s{S_W}, 28672
        s_add_u32 s{S_ST}, s{S_ST}, s3
        s_mov_b32 s{S_C}, 0x3db8aa3b
        s_mov_b32 s{S_C+1}, 0x3db8aa3b
        """)
        self.stamp('prologue')

    ACC1 = 16; B1 = 128
    def acc1(self, r, t): return self.ACC1 + (r * 4 + t) * 4
    def x_read(self, s, r):
        off = (s * 7 + r) * 1024; va = 1
        if off >= 65536: off -= 65536; va = 2
        self.xb[(s, r)] = self.bread_(f'ds_read_b128 {vr(self.B1 + 4*r)}, v{va} offset:{off}')
    def wsteps(self, kind, *a): return [self.by[(kind,) + a + (0,)], self.by[(kind,) + a + (1,)]]
    def avail(self, rows):
        for r in rows: r.avail = True; r.prev = None
    def phase1(self):
        g = self.g; c = self.c
        self.xb = {}
        self.ensure(self.wsteps('wq', 0))
        self.wait_x(0); g.barrier()
        for r in range(7): self.x_read(0, r)
        self.stamp('p1 start')
        for s in range(14):
            mf = []
            for r in range(7):
                for t in range(4):
                    a = self.acc1(r, t)
                    cc = '0' if s == 0 else vr(a)
                    def pre(s=s, r=r, t=t):
                        if r == 0 and t == 0: self.wwait('wq', s)
                        if t == 0: g.wait_lg_lazy(self.xb[(s, r)], c.age)
                    def txt(s=s, a=a, r=r, t=t, cc=cc):
                        return f'{MF} {vr(a)}, {self.wfrag(("wq", s), t)}, {vr(self.B1 + 4*r)}, {cc}'
                    mf.append((txt, pre))
            fl = []
            def bar(s=s):
                nb = False
                if s == 3: self.wait_x(1); nb = True
                if s == 7: self.wait_x(2); self.wait_x(3); nb = True
                if c.lrows_p1 and s in (c.l_a, c.l_b): nb = True
                if nb: g.barrier()
                if c.lrows_p1 and s == c.l_a: self.avail(self.L[0:3])
                if c.lrows_p1 and s == c.l_b: self.avail(self.L[0:0] + self.L[3:5])
            fl.append((0.1, bar))
            if s < 13:
                n = s + 1
                for r in range(7): fl.append((4 * r + 3, lambda n=n, r=r: self.x_read(n, r)))
                fl.append((c.look, lambda n=n: self.need(self.wsteps('wq', n))))
                fl.append((27.9, lambda n=n: self.ensure(self.wsteps('wq', n))))
            self.run(mf, fl)
            self.a_release_w(('wq', s))
        self.stamp('p1 end')

    def wo_srds(self):
        g = self.g
        g.e(f"""
        s_mul_i32 s3, s6, 229376
        s_add_u32 s{SWO}, s{S_WOP}, s3
        s_addc_u32 s{SWO+1}, s{S_WOP+1}, 0
        s_and_b32 s{SWO+1}, s{SWO+1}, 0xffff
        s_mov_b32 s{SWO+2}, 229376
        s_mov_b32 s{SWO+3}, 0x20000
        s_add_u32 s{SWOb}, s{SWO}, {7168 - 1024}
        s_addc_u32 s{SWOb+1}, s{SWO+1}, 0
        s_mov_b32 s{SWOb+2}, {229376 - 7168 + 1024}
        s_mov_b32 s{SWOb+3}, 0x20000
        """)
    def q_write(self):
        g = self.g; c = self.c
        assert all(it.pdone() for it in self.items if it.kind == 'wq')
        g.e(f"""
        v_bfe_u32 v13, v10, 4, 1
        v_lshl_add_u32 v11, v13, 3, v0
        s_mul_i32 s3, s{S_W}, 14336
        s_add_u32 s3, s3, {QBASE}
        v_add_u32 v11, s3, v11
        v_xor_b32 v12, 8, v11
        s_barrier
        """)
        T = 160; k = 0
        for r in range(7):
            for hp in range(2):
                for b in range(2):
                    d = T + 2 * (k % 16); k += 1
                    a = self.acc1(r, 2 * hp + b)
                    g.e(f'v_cvt_pk_bf16_f32 v{d}, v{a}, v{a+1}')
                    g.e(f'v_cvt_pk_bf16_f32 v{d+1}, v{a+2}, v{a+3}')
                    g.e(f'ds_write_b64 v{11+b}, {vr(d,2)} offset:{(hp*7 + r)*1024}')
                self.tick(True)
        g.e(f"""
        v_lshrrev_b32 v14, 2, v10
        v_and_b32 v14, 7, v14
        v_and_b32 v15, 3, v10
        v_lshrrev_b32 v16, 5, v10
        v_lshlrev_b32 v17, 1, v13
        v_xor_b32 v18, v15, v17
        v_lshlrev_b32 v18, 4, v18
        v_lshl_add_u32 v18, v16, 6, v18
        v_lshl_add_u32 v18, v14, 9, v18
        s_lshl_b32 s3, s{S_W}, 7
        v_add_u32 v5, s3, v18
        v_lshlrev_b32 v18, 6, v14
        v_lshl_add_u32 v18, v16, 10, v18
        v_lshrrev_b32 v19, 1, v15
        v_add_u32 v19, v19, v17
        v_lshl_add_u32 v18, v19, 4, v18
        v_and_b32 v19, 1, v15
        v_lshl_add_u32 v18, v19, 3, v18
        v_add_u32 v6, s{S_ROW}, v18
        v_xor_b32 v7, 32, v6
        v_mov_b32 v1, v156
        v_add_u32 v2, {QBASE}, v0
        """)
        self.addr['v'] = {'d': 5, 'r': (6, 7)}
        if c.lrows_p1: self.addr['k']['rl'] = 1
        self.wo_srds()
        if c.touch_wo:
            pass
        g.wait_lg_all(); g.barrier()
        self.stamp('q_write')

    SACC = 8; BQ = 232; NBQ = 6
    def sacc(self, r, t): return self.SACC + (r * 8 + t) * 4
    def qk(self):
        g = self.g; c = self.c
        units = [(pi, wp) for pi in range(len(c.passes)) for wp in range(4)]
        def uitems(pi, wp): return [self.by[('k', t, wp)] for t in c.passes[pi]]
        seq = [(pi, ks, r) for pi in range(len(c.passes)) for ks in range(8) for r in range(7)]
        rd = {}
        NB = self.NBQ
        if c.touch_wo:
            NB = 5
            g.e(f"""
            s_mul_i32 s3, s5, 224
            s_mul_i32 s{S_T}, s{S_W}, 56
            s_add_u32 s3, s3, s{S_T}
            v_lshrrev_b32 v254, 4, v0
            v_min_u32 v254, 55, v254
            v_add_u32 v254, s3, v254
            v_lshlrev_b32 v254, 7, v254
            """)
            self.addr['touch_wo'] = {'d': 254, 's': SWO}
        def bread(f):
            pi, ks, r = seq[f]
            rd[f] = self.bread_(f'ds_read_b128 {vr(self.BQ + 4*(f % NB))}, v2 offset:{(ks*7 + r)*1024}')
        for f in range(NB - 1): bread(f)
        self.ensure(uitems(0, 0))
        f = 0
        retire = self.L[:5] + self.R[:2]
        for ui, (pi, wp) in enumerate(units):
            T = c.passes[pi]; nT = len(T)
            if ui == c.stop_unit:
                for r in retire: r.avail = False
            mf = []; fl = []
            for e in range(2):
                ks = 2 * wp + e
                for r in range(7):
                    for ti, t in enumerate(T):
                        a = self.sacc(r, t)
                        cc = '0' if ks == 0 else vr(a)
                        def pre(f=f, t=t, wp=wp, ti=ti, r=r, e=e):
                            if ti == 0: g.wait_lg_lazy(rd[f], 80)
                            if r == 0 and e == 0: g.wait_lg_lazy(self.by[('k', t, wp)].rd, 80)
                        def txt(a=a, t=t, wp=wp, e=e, f=f, cc=cc):
                            return f'{MF} {vr(a)}, {ar(self.by[("k", t, wp)].reg + 4*e)}, {vr(self.BQ + 4*(f % NB))}, {cc}'
                        mf.append((txt, pre))
                    if f + NB - 1 < len(seq):
                        fl.append((len(mf) - nT + 0.2, lambda f=f: bread(f + NB - 1)))
                    f += 1
            n = len(mf)
            if ui + 1 < len(units):
                fl.append((n * c.look / 28, lambda u=units[ui + 1]: self.need(uitems(*u))))
                fl.append((n - 0.1, lambda u=units[ui + 1]: self.ensure(uitems(*u))))
            self.run(mf, fl)
            for t in T: self.a_release_k(t, wp)
        self.stamp('qk end')

    def softmax(self):
        g = self.g; c = self.c
        M = 232; TM = 240
        tk = lambda: self.tick(True)
        g.e(f"""
        s_mov_b32 s{SWO2}, s{SWO}
        s_mov_b32 s{SWO2+1}, s{SWO+1}
        s_mov_b32 s{SWO2b}, s{SWOb}
        s_mov_b32 s{SWO2b+1}, s{SWOb+1}
        s_cmp_eq_u32 s{S_W}, 3
        s_cselect_b32 s{SWO2+2}, 0, s{SWO+2}
        s_cselect_b32 s{SWO2b+2}, 0, s{SWOb+2}
        """)
        for r in range(7):
            vals = [self.sacc(r, t) + i for t in range(8) for i in range(4)]
            g.e(f'v_max3_f32 v{M+r}, v{vals[0]}, v{vals[1]}, v{vals[2]}')
            k = 3
            while k + 1 < 32:
                g.e(f'v_max3_f32 v{M+r}, v{M+r}, v{vals[k]}, v{vals[k+1]}'); k += 2
                if k % 8 == 3: tk()
            g.e(f'v_max_f32 v{M+r}, v{M+r}, v{vals[31]}')
        def xreduce(base, tmp, op):
            for r in range(7): g.e(f'v_mov_b32 v{tmp+r}, v{base+r}')
            for r in range(7): g.e(f'v_permlane32_swap_b32 v{base+r}, v{tmp+r}')
            for r in range(7): g.e(f'{op} v{base+r}, v{base+r}, v{tmp+r}')
            tk()
            for r in range(7): g.e(f'v_mov_b32 v{tmp+r}, v{base+r}')
            for r in range(7): g.e(f'v_permlane16_swap_b32 v{base+r}, v{tmp+r}')
            for r in range(7): g.e(f'{op} v{base+r}, v{base+r}, v{tmp+r}')
        xreduce(M, TM, 'v_max_f32')
        self.retire_rows(self.L[:5] + self.R[:2])
        g.e(f"""
        v_and_b32 v2, 0xf0, v0
        v_add_u32 v2, {MAXA}, v2
        s_lshl_b32 s3, s{S_W}, 2
        v_add_u32 v1, s3, v2
        s_mov_b64 exec, 0xffff
        """)
        for r in range(7): g.e(f'ds_write_b32 v1, v{M+r} offset:{r*256}')
        g.e('s_mov_b64 exec, -1')
        g.wait_lg_all(); g.barrier()
        rd = {}
        for r in range(7):
            if r >= 4:
                rr = r - 4
                g.wait_lg(rd[rr]); b = TM + 4 * (rr % 4)
                g.e(f'v_max3_f32 v{M+rr}, v{b}, v{b+1}, v{b+2}')
                g.e(f'v_max_f32 v{M+rr}, v{M+rr}, v{b+3}')
            rd[r] = g.op(f'ds_read_b128 {vr(TM + 4*(r % 4))}, v2 offset:{r*256}')
        for rr in range(3, 7):
            g.wait_lg(rd[rr]); b = TM + 4 * (rr % 4)
            g.e(f'v_max3_f32 v{M+rr}, v{b}, v{b+1}, v{b+2}')
            g.e(f'v_max_f32 v{M+rr}, v{M+rr}, v{b+3}')
        for r in range(7): g.e(f'v_mul_f32 v{M+r}, s{S_C}, v{M+r}')
        SUM = 240
        g.e(f"""
        s_mul_i32 s3, s{S_W}, 28672
        v_add_u32 v1, s3, v0
        """)
        for r in range(7):
            for q in range(4):
                t0 = self.sacc(r, 2 * q); t1 = self.sacc(r, 2 * q + 1)
                regs = [t0 + i for i in range(4)] + [t1 + i for i in range(4)]
                for x in regs: g.e(f'v_fma_f32 v{x}, v{x}, s{S_C}, -v{M+r}')
                tk()
                for x in regs: g.e(f'v_exp_f32 v{x}, v{x}')
                tk()
                if q == 0:
                    g.e(f'v_add_f32 v{SUM+r}, v{regs[0]}, v{regs[1]}'); rest = regs[2:]
                else:
                    rest = regs
                for x in rest: g.e(f'v_add_f32 v{SUM+r}, v{SUM+r}, v{x}')
                g.e(f'v_cvt_pk_bf16_f32 v{t0}, v{t0}, v{t0+1}')
                g.e(f'v_cvt_pk_bf16_f32 v{t0+1}, v{t0+2}, v{t0+3}')
                g.e(f'v_cvt_pk_bf16_f32 v{t0+2}, v{t1}, v{t1+1}')
                g.e(f'v_cvt_pk_bf16_f32 v{t0+3}, v{t1+2}, v{t1+3}')
                g.e(f'ds_write_b128 v1, {vr(t0)} offset:{(q*7 + r)*1024}')
                tk()
        TM2 = 248
        xreduce(SUM, TM2, 'v_add_f32')
        g.e(f"""
        v_add_u32 v2, {SUMA - MAXA}, v2
        s_lshl_b32 s3, s{S_W}, 2
        v_add_u32 v1, s3, v2
        s_mov_b64 exec, 0xffff
        """)
        for r in range(7): g.e(f'ds_write_b32 v1, v{SUM+r} offset:{r*256}')
        g.e('s_mov_b64 exec, -1')
        g.e('v_add_u32 v1, 0x10000, v0')
        g.e(f"""
        v_lshrrev_b32 v10, 4, v0
        v_lshrrev_b32 v14, 2, v10
        v_and_b32 v14, 7, v14
        v_and_b32 v15, 3, v10
        v_lshrrev_b32 v16, 5, v10
        v_bfe_u32 v13, v10, 4, 1
        v_xor_b32 v17, v15, v13
        v_lshlrev_b32 v17, 4, v17
        v_lshl_add_u32 v18, v16, 6, v17
        s_movk_i32 s3, 896
        v_mad_u32_u24 v18, v14, s3, v18
        s_lshl_b32 s3, s{S_W}, 8
        v_add_u32 v148, s3, v18
        v_lshlrev_b32 v18, 6, v14
        v_lshl_add_u32 v18, v16, 10, v18
        v_add_u32 v18, v18, v17
        v_and_b32 v19, 1, v15
        v_lshl_add_u32 v18, v19, 3, v18
        v_add_u32 v149, s{S_ROW}, v18
        v_xor_b32 v150, 8, v149
        v_subrev_u32 v151, {RING0}, v6
        v_subrev_u32 v152, {RING0}, v7
        v_subrev_u32 v153, {RING0}, v149
        v_subrev_u32 v154, {RING0}, v150
        """)
        self.addr['wo'] = {'d': 148, 'r': (149, 150)}
        if c.lrows_pv:
            self.addr['wo']['rl'] = (153, 154); self.v_rl = (151, 152)
        g.wait_lg_all(); g.barrier()
        self.stamp('softmax end')

    OACC = 8; B3 = 120
    def oacc(self, r, t): return self.OACC + (r * 4 + t) * 4
    def p_read(self, dst, frag):
        off = frag * 1024; va = 0
        if off >= 65536: off -= 65536; va = 1
        return self.bread_(f'ds_read_b128 {vr(dst)}, v{va} offset:{off}')
    def pv(self):
        g = self.g; c = self.c
        pb = {}
        for r in range(7): pb[(0, r)] = self.p_read(self.B3 + 4 * r, r)
        self.ensure(self.wsteps('v', 0))
        for u in range(16):
            mf = []; fl = []
            for r in range(7):
                for t in range(4):
                    a = self.oacc(r, t)
                    cc = '0' if u == 0 else vr(a)
                    def pre(u=u, r=r, t=t):
                        if r == 0 and t == 0: self.wwait('v', u)
                        if t == 0: g.wait_lg_lazy(pb[(u, r)], c.age)
                    def txt(u=u, a=a, r=r, t=t, cc=cc):
                        return f'{MF} {vr(a)}, {self.wfrag(("v", u), t)}, {vr(self.B3 + 4*r)}, {cc}'
                    mf.append((txt, pre))
            if u == 8 and c.lrows_pv:
                def lrows():
                    g.barrier(); self.avail(self.L); self.addr['v']['rl'] = self.v_rl
                fl.append((0.05, lrows))
            if u < 15:
                n = u + 1
                for r in range(7):
                    def f(n=n, r=r): pb[(n, r)] = self.p_read(self.B3 + 4 * r, n * 7 + r)
                    fl.append((4 * r + 3, f))
                fl.append((c.look, lambda n=n: self.need(self.wsteps('v', n))))
                fl.append((27.9, lambda n=n: self.ensure(self.wsteps('v', n))))
            else:
                fl.append((c.look, lambda: self.need(self.wsteps('wo', 0, 0))))
            self.run(mf, fl)
            self.a_release_w(('v', u))
        self.stamp('pv end')

    def o_write(self):
        g = self.g
        T = 184
        rd = [g.op(f'ds_read_b128 {vr(T + 4*r)}, v2 offset:{r*256}') for r in range(7)]
        g.e(f"""
        s_mul_i32 s3, s{S_W}, 14336
        s_add_u32 s3, s3, {OBASE}
        v_add_u32 v2, s3, v0
        v_add_u32 v1, {OBASE}, v0
        """)
        for r in range(7):
            g.wait_lg(rd[r]); b = T + 4 * r
            g.e(f'v_add_f32 v{b}, v{b}, v{b+1}')
            g.e(f'v_add_f32 v{b+2}, v{b+2}, v{b+3}')
        for r in range(7):
            b = T + 4 * r
            g.e(f'v_add_f32 v{b}, v{b}, v{b+2}')
        for r in range(7):
            b = T + 4 * r
            g.e(f'v_rcp_f32 v{b}, v{b}')
        g.barrier()
        P = 212; k = 0
        for r in range(7):
            b = T + 4 * r
            for t in range(4):
                for i in range(4):
                    x = self.oacc(r, t) + i
                    g.e(f'v_mul_f32 v{x}, v{x}, v{b}')
            self.tick(True)
            for hp in range(2):
                d = P + 4 * (k % 8); k += 1
                a0 = self.oacc(r, 2 * hp); a1 = self.oacc(r, 2 * hp + 1)
                g.e(f'v_cvt_pk_bf16_f32 v{d}, v{a0}, v{a0+1}')
                g.e(f'v_cvt_pk_bf16_f32 v{d+1}, v{a0+2}, v{a0+3}')
                g.e(f'v_cvt_pk_bf16_f32 v{d+2}, v{a1}, v{a1+1}')
                g.e(f'v_cvt_pk_bf16_f32 v{d+3}, v{a1+2}, v{a1+3}')
                g.e(f'ds_write_b128 v2, {vr(d)} offset:{(hp*7 + r)*1024}')
                self.tick(True)
        g.wait_lg_all(); g.barrier()
        self.stamp('o_write')

    PK = 188
    def o_read(self, dst, frag):
        return self.bread_(f'ds_read_b128 {vr(dst)}, v1 offset:{frag*1024}')
    def out_proj(self):
        g = self.g; c = self.c
        ob = {}
        def group(gam, pending):
            for ks in range(8):
                mf = []; fl = []
                for r in range(7):
                    for t in range(4):
                        a = self.oacc(r, t)
                        cc = '0' if ks == 0 else vr(a)
                        def pre(ks=ks, r=r, t=t):
                            if r == 0 and t == 0: self.wwait('wo', gam, ks)
                            if t == 0: g.wait_lg_lazy(ob[(gam, ks, r)], c.age)
                        def txt(ks=ks, a=a, r=r, t=t, cc=cc):
                            return f'{MF} {vr(a)}, {self.wfrag(("wo", gam, ks), t)}, {vr(self.B3 + 4*r)}, {cc}'
                        mf.append((txt, pre))
                nxt = None
                if ks < 7: nxt = (gam, ks + 1)
                elif gam == 0: nxt = (1, 0)
                if nxt:
                    ng, nk = nxt
                    for r in range(7):
                        def f(ng=ng, nk=nk, r=r): ob[(ng, nk, r)] = self.o_read(self.B3 + 4 * r, nk * 7 + r)
                        fl.append((4 * r + 3, f))
                    fl.append((c.look, lambda ng=ng, nk=nk: self.need(self.wsteps('wo', ng, nk))))
                    fl.append((27.9, lambda ng=ng, nk=nk: self.ensure(self.wsteps('wo', ng, nk))))
                if pending:
                    take = pending[:4]; del pending[:4]
                    for pos, f in zip(spread(4, 2.5, 24.5), take): fl.append((pos, f))
                if ks == 7:
                    for r in range(7):
                        fl.append((4 * r + 3 + 6.5, lambda r=r: self.pack(r)))
                self.run(mf, fl)
                self.a_release_w(('wo', gam, ks))
            return [(lambda r=r, h=h: self.store(gam, r, h)) for r in range(7) for h in range(2)]
        for r in range(7): ob[(0, 0, r)] = self.o_read(self.B3 + 4 * r, r)
        self.ensure(self.wsteps('wo', 0, 0))
        st0 = group(0, [])
        g.e(f's_cmp_eq_u32 s{S_W}, 3')
        g.e('s_cbranch_scc1 L_w3')
        save = (g.vm, g.vm_done, g.lg, g.lg_done, list(g.out_vm), list(g.out_lg), list(g.hist))
        st1 = group(1, st0[:])
        for f in st1: f()
        g.e('s_branch L_done')
        g.label('L_w3')
        g.vm, g.vm_done, g.lg, g.lg_done, g.out_vm, g.out_lg, g.hist = save
        g.e('s_nop 7')
        g.e('s_waitcnt vmcnt(0) lgkmcnt(0)'); g.vm_done = g.vm; g.lg_done = g.lg
        for f in st0: f()
        g.label('L_done')
    def pack(self, r):
        g = self.g
        for h in range(2):
            d = self.PK + (r * 2 + h) * 4
            a0 = self.oacc(r, 2 * h); a1 = self.oacc(r, 2 * h + 1)
            g.e(f'v_cvt_pk_bf16_f32 v{d}, v{a0}, v{a0+1}')
            g.e(f'v_cvt_pk_bf16_f32 v{d+1}, v{a0+2}, v{a0+3}')
            g.e(f'v_cvt_pk_bf16_f32 v{d+2}, v{a1}, v{a1+1}')
            g.e(f'v_cvt_pk_bf16_f32 v{d+3}, v{a1+2}, v{a1+3}')
    def store(self, gam, r, h):
        g = self.g; c = self.c
        unit = gam * 14 + r * 2 + h
        d = self.PK + (r * 2 + h) * 4
        off = unit * 1024
        g.e(f's_add_u32 s{S_T}, s{S_ST}, {off & ~0xfff}')
        g.op(f'buffer_store_dwordx4 {vr(d)}, v0, {srd(SWS)}, s{S_T} offen offset:{off & 0xfff}{c.st_part}')

    def epilogue(self):
        g = self.g; c = self.c
        if c.stamps:
            g.e('s_waitcnt vmcnt(0) lgkmcnt(0)')
            g.vm_done = g.vm; g.lg_done = g.lg
            self.stamp('end')
            n = self.nst
            g.e(f"""
            s_cmp_lg_u32 s{S_W}, 0
            s_cbranch_scc1 L_exit
            s_mov_b32 s4, s14
            s_and_b32 s5, s15, 0xffff
            s_mov_b32 s6, 0x10000000
            s_mov_b32 s7, 0x20000
            s_mul_i32 s3, s2, {8*n}
            s_add_u32 s3, s3, {200<<20}
            v_mov_b32 v2, 0
            s_mov_b64 exec, 1
            """)
            for k in range(n):
                g.e(f'v_mov_b32 v4, s{S_STAMP+2*k}')
                g.e(f'v_mov_b32 v5, s{S_STAMP+2*k+1}')
                g.e(f'buffer_store_dwordx2 v[4:5], v2, s[4:7], s3 offen offset:{8*k}')
                g.e('s_waitcnt vmcnt(0)'); g.vm_done = g.vm
        else:
            self.log.append(('end', g.t, self.ip, self.pp, g.nbytes))
        g.check = False
        g.label('L_exit')
        g.e('s_endpgm')

    def main_kernel(self):
        self.prologue()
        self.phase1()
        self.q_write()
        self.qk()
        self.softmax()
        self.pv()
        self.o_write()
        self.out_proj()
        self.epilogue()
        return self.g.text()

from gen2 import reduce_kernel

def build(cfg):
    G = Gen(cfg)
    body = G.main_kernel()
    red = reduce_kernel()
    name = 'attn_main_kernel'
    txt = make_file([(name, 256, 256, LDS_BYTES), ('head_reduce_kernel', 392, 256, 0)],
                    [(name, body, 512, 102, 256), ('head_reduce_kernel', red, 96, 40, 96)])
    return txt, G

if __name__ == '__main__':
    ap = argparse.ArgumentParser()
    ap.add_argument('-o', default='f3.s')
    ap.add_argument('--stamps', action='store_true')
    ap.add_argument('--set', action='append', default=[])
    ap.add_argument('-v', action='store_true')
    a = ap.parse_args()
    cfg = Cfg()
    cfg.stamps = a.stamps
    for kv in a.set:
        k, v = kv.split('=', 1)
        setattr(cfg, k, eval(v))
    txt, G = build(cfg)
    open(a.o, 'w').write(txt)
    print('instr', G.g.ninstr, 'nops', G.g.nops, 'stamps', G.nst, 'bytes', len(txt), 'code', G.g.nbytes)
    for nm, t, ip, pp, nb in G.log: print('   %-12s t=%6.2fus issued=%d parked=%d code=%d' % (nm, t / 2000, ip, pp, nb))
    if a.v:
        for it in G.items:
            if it.kind in ('x',): continue
            print(it, it.row, 'issue %.2f arr %.2f park %s reg %s' % (it.tissue / 2000, it.arr / 2000, '%.2f' % (it.tpark / 2000) if it.tpark else '-', it.reg))
```

```python
import sys, argparse, re
sys.path.insert(0, 'tools')
from emit import *
from gen_common import make_file

class Cfg:
    stamps = False
    passes = [[0, 1], [2, 3], [4, 5], [6, 7]]
    nt_k = ' nt'; nt_v = ' nt'; nt_wq = ''; nt_x = ''; nt_wo = ''
    st_part = ''
    lat0 = 3000
    lat = 2000
    lat_w = 1000
    d_kv = 400
    d_w = 100
    delay = 100
    look = 12
    maxn = 3; maxb = 16
    touch_wq = False; touch_wo = False
    touch_wo_at = 20
    k_start = 28
    k_mix = 1
    lrows_p1 = True
    lrows_pv = True
    l_a = 4; l_b = 8
    stop_unit = 11
    age = 160
    no_dma = ()
    no_park = ()
    no_b = False
    pstamps = False
    touch_wt = 8
    cheat = False
    rot = True
    rot_o = True
    stamp_list = None
    light = True
    cap0 = 16
    lrows_wq = True
    cap = 16
    first = "x0 w4 x1 w3 x2 x3"
    pro_stop = 11

RING0 = 100352
QBASE = 43008
OBASE = 57344
MAXA = 157696
SUMA = 159744
SCR = 161792
LDS_BYTES = 163840

SX, SK, SK2, SV, SV2, SWQ, SWQ2, SWS = 20, 24, 28, 32, 36, 40, 44, 48
SWO, SWOb = 40, 44
SWO2, SWO2b = 24, 28
S_ROW = 52
S_W = 66; S_SCR = 67
S_C = 68
S_OK = 70; S_OV = 71
S_STAMP = 72
S_OW = 92; S_C32K = 93; S_C224K = 94; S_XM = 95
S_WOP = 96
S_XM3 = 98; S_X3O = 99; S_OFF = 100
S_ST = 18; S_T = 19; S_XO = 12; S_T2 = 13; S_B = 5

def srd(b): return f's[{b}:{b+3}]'
def vr(b, n=4): return f'v[{b}:{b+n-1}]'
def ar(b, n=4): return f'a[{b}:{b+n-1}]'
MF = 'v_mfma_f32_16x16x32_bf16'

LIT = re.compile(r'(?<![\w\[:])(0x[0-9a-fA-F]+|-?\d+)(?![\w\]:])')
def isize(l):
    sp = l.split(None, 1); op = sp[0]; rest = sp[1] if len(sp) > 1 else ''
    if op.startswith(('v_mfma', 'ds_', 'buffer_', 'global_', 's_load', 's_memrealtime')): return 8
    if op.startswith(('s_waitcnt', 's_nop', 's_barrier', 's_movk', 's_addk', 's_cbranch', 's_branch', 's_endpgm')): return 4
    ops = split_ops(rest)
    lit = False
    for o in ops:
        o = o.split()[0] if o.split() else o
        if re.fullmatch(r'0x[0-9a-fA-F]+|-?\d+', o):
            v = int(o, 0)
            if not (-16 <= v <= 64): lit = True
    if op.startswith('s_'): return 8 if lit else 4
    v3 = op.startswith(('v_fma', 'v_max3', 'v_mad', 'v_lshl_add', 'v_add3', 'v_cvt_pk', 'v_pk_', 'v_bfe', 'v_mul_lo', 'v_perm_', 'v_permlane', 'v_lshl_or', 'v_and_or', 'v_or3', 'v_readfirstlane_x'))
    if v3: return 8
    return 8 if lit else 4

class TEmit(Emit):
    def __init__(self):
        super().__init__()
        self.t = 0; self.tm = -100
        self.lg_time = {}
        self.gn = 0; self.gb = 0; self.gm = 0
        self.nbytes = 0
    def newgap(self): self.gn = 0; self.gb = 0; self.gm = 0
    def wait_lg_lazy(self, idx, age=160):
        if idx is None or idx < 0 or idx < self.lg_done: return
        j = idx
        while j + 1 < self.lg and self.t - self.lg_time[j + 1] >= age: j += 1
        self.wait_lg(j)
    def _e(self, l):
        r = super()._e(l)
        i = self.hist[-1]
        sz = isize(l.split(';')[0].strip())
        self.nbytes += sz
        if i.cls in ('dsr', 'dsw'): self.lg_time[r] = self.t
        if i.cls == 'mfma':
            self.t = max(self.t, self.tm + 16); self.tm = self.t; self.t += 8
            self.newgap()
        else:
            self.gn += 1; self.gb += sz
            if i.cls in ('dsr', 'dsw', 'vml', 'vms'): self.gm += 1
            if i.cls == 'trans': self.t += 8
            elif i.cls in ('valu', 'permlane'): self.t += 4
            else: self.t += 2
        return r

class Row:
    def __init__(s, name, base, sreg, low):
        s.name = name; s.base = base; s.sreg = sreg; s.low = low
        s.avail = False
        s.busy = False
        s.prev = None
    def __repr__(s): return s.name

class Item:
    def __init__(s, kind, *a):
        s.kind = kind; s.a = a
        s.done = 0; s.pm0 = False; s.pso = False
        s.vm = None; s.arr = None; s.row = None
        s.parked = 0; s.rd = None; s.reg = None; s.tpark = None; s.idx = None
    def np(s): return 1 if s.kind in ('x', 'touch') else 2
    def nrd(s): return {'k': 2, 'x': 0, 'touch': 0}.get(s.kind, 4)
    def pdone(s): return s.done == s.np() and s.parked == s.nrd()
    def __repr__(s): return f'{s.kind}{s.a}'

class Gen:
    def __init__(self, cfg):
        self.c = cfg
        self.g = TEmit()
        self.nst = 0
        self.log = []
        self.trace = []

    def stamp(self, name=''):
        minor = name.startswith('P') or name.startswith('_')
        if not name.startswith('_'): self.log.append((name, self.g.t, self.ip, self.pp, self.g.nbytes))
        if not self.c.stamps: return
        if self.c.stamp_list is not None:
            if name not in self.c.stamp_list: return
        elif minor: return
        if self.nst >= 10: return
        g = self.g
        k = S_STAMP + 2 * self.nst
        g.e(f's_memrealtime s[{k}:{k+1}]')
        if not self.c.light or name == 'end':
            g.e('s_waitcnt lgkmcnt(0)')
            g.lg_done = g.lg
        self.nst += 1

    def build_order(self):
        c = self.c
        korder = []
        for T in c.passes:
            for wp in range(4):
                for t in T: korder.append(Item('k', t, wp))
        o = []
        def X(jj):
            n = 7 if jj < 3 else 4
            for r in range(n): o.append(Item('x', jj, r))
        wq = [Item('wq', s, h) for s in range(14) for h in range(2)]
        kq = list(korder); nk = 0
        def pushk():
            nonlocal nk
            o.append(kq.pop(0)); nk += 1
            if c.touch_wo and nk == c.touch_wo_at: o.append(Item('touch', 'wo'))
        n = 0
        for tok in c.first.split():
            if tok[0] == 'x': X(int(tok[1:]))
            elif tok[0] == 'w': k = int(tok[1:]); o += wq[n:n + k]; n += k
            elif tok[0] == 'k':
                for _ in range(int(tok[1:])): pushk()
            elif tok == 'T':
                if c.touch_wq: o.append(Item('touch', 'wq'))
        rest = wq[n:]
        acc = 0.0
        for it in rest:
            o.append(it); n += 1
            if n >= c.k_start:
                acc += c.k_mix
                while acc >= 1 and kq:
                    pushk(); acc -= 1
        while kq: pushk()
        for u in range(16):
            for h in range(2): o.append(Item('v', u, h))
        for gam in range(2):
            for i in range(8):
                for h in range(2): o.append(Item('wo', gam, i, h))
        for i, it in enumerate(o): it.idx = i
        self.items = o
        self.by = {(it.kind,) + it.a: it for it in o}
        self.ip = 0; self.pp = 0
        self.capv = c.cap
        self.rows = [Row(f'R{k}', RING0 + 8192 * k, S_ROW + k, False) for k in range(7)] + \
                    [Row(f'L{k}', 8192 * k, S_ROW + 7 + k, True) for k in range(7)]
        self.R = self.rows[:7]; self.L = self.rows[7:]
        for r in self.R: r.avail = True
        self.afree = [True] * 32
        self.blk = {}
        self.last_arr = {'kv': 0, 'w': 0}
        self.t0 = None
        self.addr = {}
        self.cur = None
        self.must = 0
        self.off = {}
        self.stalls = []
        self.wt = {}
        self.vmit = {}

    def a_alloc(self, it):
        if it.kind == 'k':
            cand = [u for u in range(32) if self.afree[u] and not self.afree[u ^ 1]]
            if not cand: cand = [u for u in range(32) if self.afree[u]]
            if not cand: return None
            u = cand[0]; self.afree[u] = False
            return 8 * u
        key = (it.kind,) + it.a[:-1]
        if key in self.blk: return self.blk[key]
        for u in range(0, 32, 2):
            if self.afree[u] and self.afree[u + 1]:
                self.afree[u] = self.afree[u + 1] = False
                self.blk[key] = 8 * u
                return 8 * u
        return None
    def a_can(self, it):
        if it.reg is not None: return True
        if it.kind == 'k': return any(self.afree)
        key = (it.kind,) + it.a[:-1]
        if key in self.blk: return True
        return any(self.afree[u] and self.afree[u + 1] for u in range(0, 32, 2))
    def a_release_k(self, t, wp): self.afree[self.by[('k', t, wp)].reg // 8] = True
    def a_release_w(self, key):
        b = self.blk[key]; self.afree[b // 8] = self.afree[b // 8 + 1] = True

    def free_row(self, it, force):
        g = self.g; best = None
        lowok = 'rl' in self.addr[it.kind] or (self.c.cheat and it.kind == 'v')
        for r in (self.L + self.R if it.kind == 'k' else self.rows):
            if r.busy or not r.avail or (r.low and not lowok): continue
            p = r.prev
            if p is None or p.rd is None or p.rd < g.lg_done: return r
            if force or g.t - p.tpark >= self.c.delay:
                if best is None or p.tpark < best.prev.tpark: best = r
        return best
    def next_issue(self):
        if self.ip >= len(self.items): return None
        it = self.items[self.ip]
        k = it.kind if it.kind != 'touch' else 'touch_' + it.a[0]
        if it.kind == 'x' and it.a[0] == 3: k = 'x3'
        if k not in self.addr:
            if k == 'touch_wo' and self.ip + 1 < len(self.items):
                nx = self.items[self.ip + 1]
                self.items[self.ip], self.items[self.ip + 1] = nx, it
                nx.idx, it.idx = self.ip, self.ip + 1
                return self.next_issue()
            return None
        return it
    def off_of(self, it):
        if it.kind == 'k': t, wp = it.a; return t * 8192 + wp * 128
        if it.kind == 'wq': st, h = it.a; return (32 * st + 4 * h) * 8192
        if it.kind == 'v': u, h = it.a; return (32 * u + 16 * h) * 512
        if it.kind == 'wo': gam, i, h = it.a; return (32 * i + 16 * h) * 896 + 128 * gam
    SOFF = {'k': S_OK, 'wq': S_OW, 'v': S_OV, 'wo': S_OW}
    def wrap(self, sreg, lim):
        g = self.g
        g.e(f's_cmp_ge_u32 s{sreg}, {lim}')
        g.e(f's_cselect_b32 s{S_T2}, {lim}, 0')
        g.e(f's_sub_u32 s{sreg}, s{sreg}, s{S_T2}')
    def emit_soff(self, it):
        g = self.g; c = self.c
        new = self.off_of(it); s = self.SOFF[it.kind]
        old = self.off.get(it.kind)
        if it.kind == 'wq' and c.rot:
            st, h = it.a
            if old is None: pass
            elif h == 1: g.e(f's_add_u32 s{s}, s{s}, s{S_C32K}')
            else:
                g.e(f's_add_u32 s{s}, s{s}, s{S_C224K}')
                if st % 2 == 0: self.wrap(s, 14 * 262144)
        elif it.kind == 'wo' and c.rot_o:
            gam, i, h = it.a
            if old is None: g.e(f's_mul_i32 s{s}, s{S_B}, 28672')
            else:
                g.e(f's_addk_i32 s{s}, {14336 + (128 if (gam, i, h) == (1, 0, 0) else 0)}')
                if h == 0: self.wrap(s, 229376)
        elif old is None: g.e(f's_mov_b32 s{s}, {new}')
        else:
            d = new - old
            if d == 0: pass
            elif -32768 <= d <= 32767: g.e(f's_addk_i32 s{s}, {d}')
            elif it.kind == 'wq' and d == 32768: g.e(f's_add_u32 s{s}, s{s}, s{S_C32K}')
            elif it.kind == 'wq' and d == 229376: g.e(f's_add_u32 s{s}, s{s}, s{S_C224K}')
            else: g.e(f's_mov_b32 s{s}, {new}')
        self.off[it.kind] = new
    def start_issue(self, it, force=False):
        if it.kind in ('touch', 'x'):
            self.cur = it; return True
        r = self.free_row(it, force)
        if r is None: return False
        p = r.prev
        if p is not None: self.g.wait_lg_lazy(p.rd, self.c.age)
        it.row = r; r.busy = True
        self.cur = it
        return True
    def finish_issue(self, it):
        g = self.g; c = self.c
        if self.t0 is None: self.t0 = g.t
        cls = 'kv' if it.kind in ('k', 'v') else 'w'
        lat = c.lat if cls == 'kv' else c.lat_w
        d = {'k': c.d_kv, 'v': c.d_kv, 'x': c.d_w / 2, 'touch': 0}.get(it.kind, c.d_w)
        lat = max(lat, self.t0 + c.lat0 - g.t)
        prev = max(self.last_arr.values())
        it.arr = max(g.t + lat, self.last_arr[cls] + d, prev)
        self.last_arr[cls] = it.arr
        it.tissue = g.t
        self.ip += 1
        self.cur = None
    def step_issue(self, memok):
        g = self.g; c = self.c; it = self.cur
        if it.kind == 'touch':
            if not it.pm0:
                g.e(f's_mov_b32 m0, s{S_SCR}'); it.pm0 = True; return True
            if not memok: return False
            A = self.addr['touch_' + it.a[0]]
            it.vm = self.dma(it.kind, f'buffer_load_dword v{A["d"]}, {srd(A["s"])}, 0 offen lds')
            self.wt[it.vm] = c.touch_wt; self.vmit[it.vm] = it
            it.done = 1; self.finish_issue(it); return True
        if it.kind == 'x':
            jj, r = it.a
            if not it.pm0:
                if jj < 3: g.e(f's_add_u32 m0, s{S_XM}, {jj*28672 + r*1024}')
                else: g.e(f's_add_u32 m0, s{S_XM3}, {r*1024}')
                it.pm0 = True; return True
            if not it.pso:
                it.pso = True
                if jj < 3:
                    if r == 0:
                        it.so = f's{S_XO}'
                        if jj > 0:
                            g.e(f's_addk_i32 s{S_XO}, 256'); self.wrap(S_XO, 896); return True
                    else:
                        g.e(f's_add_u32 s{S_OFF}, s{S_XO}, {r*7168}'); it.so = f's{S_OFF}'; return True
                else:
                    g.e(f's_add_u32 s{S_OFF}, s{S_X3O}, {r*7168}'); it.so = f's{S_OFF}'; return True
            if not memok: return False
            va = self.addr['x']
            it.vm = self.dma('x', f'buffer_load_dwordx4 v{va}, {srd(SX)}, {it.so} offen{c.nt_x} lds')
            self.vmit[it.vm] = it
            it.done = 1; self.finish_issue(it); return True
        if not it.pm0:
            g.e(f's_mov_b32 m0, s{it.row.sreg}'); it.pm0 = True; return True
        if not it.pso:
            n0 = g.ninstr
            self.emit_soff(it); it.pso = True
            if g.ninstr != n0: return True
        if not memok: return False
        e = it.done
        if it.kind == 'k': s = (SK, SK2)[e]; nt = c.nt_k
        elif it.kind == 'wq': s = (SWQ, SWQ2)[e]; nt = c.nt_wq
        elif it.kind == 'v': s = (SV, SV2)[e]; nt = c.nt_v
        else:
            s = ((SWO, SWOb), (SWO2, SWO2b))[it.a[0]][e]; nt = c.nt_wo
        o = ' offset:1024' if e else ''
        it.vm = self.dma(it.kind, f'buffer_load_dwordx4 v{self.addr[it.kind]["d"]}, {srd(s)}, s{self.SOFF[it.kind]} offen{o}{nt} lds')
        self.vmit[it.vm] = it
        it.done += 1
        if it.done == 2: self.finish_issue(it)
        return True
    def inflight(self):
        g = self.g
        return sum(self.wt.get(i, 1) for i in range(g.vm_done, g.vm))
    def cap_ok(self, it):
        w = self.c.touch_wt if it.kind == 'touch' else it.np()
        cap = self.capv
        if self.inflight() + w <= cap: return True
        g = self.g; j = g.vm_done; last = None
        while j < g.vm:
            h = self.vmit.get(j)
            if h is None or h.kind not in ('x', 'touch') or h.arr is None or h.arr > g.t: break
            last = j; j += 1
        if last is not None:
            g.wait_vm(last)
            return self.inflight() + w <= cap
        return False
    def dma(self, kind, txt):
        if kind in self.c.no_dma: return None
        return self.g.op(txt)
    def rdl(self, kind, txt):
        if kind in self.c.no_park: return -1
        return self.g.op(txt)
    def bread_(self, txt):
        if self.c.no_b: return None
        return self.g.op(txt)
    def park_head(self):
        while self.pp < len(self.items) and self.items[self.pp].nrd() == 0 and self.items[self.pp].done: self.pp += 1
        if self.pp >= len(self.items): return None
        it = self.items[self.pp]
        if it.done < it.np() or it.nrd() == 0: return None
        return it
    def park_wait(self, it):
        g = self.g
        g.wait_vm(it.vm)
        if it.arr > g.t:
            self.stalls.append((it, g.t, it.arr - g.t)); g.t = it.arr
        it.reg = self.a_alloc(it)
        assert it.reg is not None, ('no AGPR space', it)
    def park_read(self, it):
        g = self.g
        if it.reg is None: self.park_wait(it)
        A = self.addr[it.kind]
        row = it.row
        if row.low and 'rl' not in A: R = A['r']; ro = 0
        elif row.low: R = A['rl']; ro = row.base
        else: R = A['r']; ro = row.base - RING0
        k = it.parked
        if it.kind == 'k':
            it.rd = self.rdl(it.kind, f'ds_read_b128 {ar(it.reg + 4*k)}, v{R[k]} offset:{ro}')
        else:
            h = it.a[-1]
            it.rd = self.rdl(it.kind, f'ds_read_b64_tr_b16 {ar(it.reg + 4*k + 2*h, 2)}, v{R[k & 1]} offset:{ro + (k >> 1)*512}')
        it.parked += 1
        if it.parked == it.nrd():
            it.tpark = g.t
            row.prev = it; row.busy = False
            self.pp += 1
    def tick(self, fresh=False):
        g = self.g; c = self.c
        if fresh: g.newgap()
        while g.gn < c.maxn and g.gb < c.maxb:
            memok = g.gm == 0 and g.gb + 8 <= c.maxb
            if self.cur is not None:
                if self.step_issue(memok): continue
            ph = self.park_head()
            if ph is not None and ph.reg is not None:
                if memok: self.park_read(ph); continue
            if self.cur is None:
                it = self.next_issue()
                if it is not None and self.cap_ok(it) and self.start_issue(it): continue
            if ph is not None and ph.reg is None and (ph.arr <= g.t or ph.idx < self.must) and self.a_can(ph):
                self.park_wait(ph); continue
            break
    def need(self, its):
        self.must = max(self.must, max(x.idx for x in its) + 1)
    def force_step(self):
        it = self.park_head()
        if self.cur is not None: self.step_issue(True); return
        if it is not None and it.reg is not None: self.park_read(it); return
        n = self.next_issue()
        if n is not None and self.inflight() + (self.c.touch_wt if n.kind == 'touch' else n.np()) <= self.capv:
            if self.start_issue(n): return
        if it is not None and self.a_can(it): self.park_read(it); return
        if n is not None and self.start_issue(n): return
        if n is not None and self.start_issue(n, force=True): return
        raise RuntimeError(f'stream deadlock: head {it} next {n} afree {sum(self.afree)}')
    def ensure(self, its):
        for x in its:
            while not x.pdone(): self.force_step()
    def ensure_issued(self, x):
        while x.done < x.np(): self.force_step()
    def wait_x(self, jj):
        n = 7 if jj < 3 else 4
        it = self.by[('x', jj, n - 1)]
        self.ensure_issued(it)
        self.g.wait_vm(it.vm); self.g.t = max(self.g.t, it.arr)
    def retire_rows(self, rows):
        for r in rows: r.avail = False
        while any(r.busy for r in rows): self.force_step()
        for r in rows:
            if r.prev is not None: self.g.wait_lg(r.prev.rd)
    def wfrag(self, key, t): return ar(self.blk[key] + 4 * t)
    def wwait(self, kind, *a):
        self.g.wait_lg_lazy(self.by[(kind,) + a + (1,)].rd, self.c.age)
    def run(self, mfmas, fillers):
        g = self.g
        fillers = sorted(fillers, key=lambda x: x[0])
        j = 0
        while j < len(fillers) and fillers[j][0] < 0:
            fillers[j][1](); j += 1
        for k, (txt, pre) in enumerate(mfmas):
            if pre: pre()
            g.e(txt() if callable(txt) else txt)
            while j < len(fillers) and fillers[j][0] < k + 1:
                fillers[j][1](); j += 1
            self.tick()
        while j < len(fillers):
            fillers[j][1](); j += 1

    def prologue(self):
        g = self.g; c = self.c
        self.build_order()
        g.e(f"""
        s_cmp_ge_u32 s2, 256
        s_cbranch_scc1 L_exit
        s_lshr_b32 s5, s2, 3
        s_lshr_b32 s7, s5, 1
        s_and_b32 s7, s7, 1
        s_mul_i32 s3, s7, 40
        s_load_dwordx2 s[14:15], s[0:1], 96
        s_add_u32 s0, s0, s3
        s_addc_u32 s1, s1, 0
        s_load_dwordx4 s[8:11], s[0:1], 0
        s_load_dwordx4 s[{S_ROW}:{S_ROW+3}], s[0:1], 16
        s_load_dwordx2 s[{S_WOP}:{S_WOP+1}], s[0:1], 32
        """)
        if c.stamps:
            g.e(f's_memrealtime s[{S_STAMP}:{S_STAMP+1}]'); self.nst = 1
        if c.rot:
            ROT = f"""
        s_mul_i32 s13, s5, 7
        s_lshr_b32 s13, s13, 3
        s_and_b32 s3, s6, 1
        s_mul_i32 s3, s3, 3
        s_add_u32 s13, s13, s3
        s_add_u32 s13, s13, s4
        s_cmp_ge_u32 s13, 14
        s_cselect_b32 s3, 14, 0
        s_sub_u32 s13, s13, s3
        s_cmp_ge_u32 s13, 7
        s_cselect_b32 s3, 7, 0
        s_sub_u32 s13, s13, s3
        s_lshl_b32 s{S_OW}, s13, 19
        s_lshr_b32 s3, s{S_W}, 1
        s_add_u32 s{S_XO}, s13, s3
        s_cmp_ge_u32 s{S_XO}, 7
        s_cselect_b32 s3, 7, 0
        s_sub_u32 s{S_XO}, s{S_XO}, s3
        s_lshl_b32 s{S_XO}, s{S_XO}, 7
        s_add_u32 s{S_X3O}, s13, 6
        s_cmp_ge_u32 s{S_X3O}, 7
        s_cselect_b32 s3, 7, 0
        s_sub_u32 s{S_X3O}, s{S_X3O}, s3
        s_lshl_b32 s{S_X3O}, s{S_X3O}, 7
        """
        else:
            ROT = f"""
        s_lshr_b32 s3, s{S_W}, 1
        s_lshl_b32 s{S_XO}, s3, 7
        s_movk_i32 s{S_X3O}, 768
        """
        g.e(f"""
        v_lshrrev_b32 v1, 6, v0
        v_and_b32 v10, 63, v0
        s_and_b32 s4, s2, 7
        s_and_b32 s6, s5, 1
        v_readfirstlane_b32 s{S_W}, v1
        s_lshr_b32 s5, s5, 2
        s_lshl_b32 s3, s4, 1
        s_add_u32 s6, s3, s6
        v_lshlrev_b32 v0, 4, v10
        v_lshrrev_b32 v16, 3, v10
        v_and_b32 v17, 7, v10
        v_and_b32 v18, 6, v16
        v_xor_b32 v17, v17, v18
        v_lshlrev_b32 v17, 4, v17
        s_movk_i32 s3, 896
        v_mad_u32_u24 v9, v16, s3, v17
        s_and_b32 s3, s{S_W}, 1
        s_mul_i32 s3, s3, 50176
        v_add_u32 v8, s3, v9
        {ROT}
        s_mul_i32 s{S_XM}, s{S_W}, 7168
        s_mul_i32 s3, s5, 100352
        s_lshl_b32 s{S_T}, s6, 9
        s_waitcnt lgkmcnt(0)
        s_add_u32 s{SX}, s8, s3
        s_addc_u32 s{SX+1}, s9, 0
        s_and_b32 s{SX+1}, s{SX+1}, 0xffff
        s_mov_b32 s{SX+2}, 100352
        s_mov_b32 s{SX+3}, 0x20000
        """)
        g.lg_done = g.lg
        self.addr['x'] = 8
        self.stamp('P kernarg')
        def pump(stop=lambda it: False):
            while True:
                it = self.cur or self.next_issue()
                if it is None: return
                if self.cur is None:
                    if stop(it) or self.inflight() + (c.touch_wt if it.kind == 'touch' else it.np()) > c.cap0: return
                    if not self.start_issue(it): return
                else: self.step_issue(True)
        pump()
        self.stamp('P x0')
        g.e(f"""
        s_add_u32 s{SWQ}, s{S_ROW+2}, s{S_T}
        s_addc_u32 s{SWQ+1}, s{S_ROW+3}, 0
        s_and_b32 s{SWQ+1}, s{SWQ+1}, 0xffff
        s_sub_u32 s{SWQ+2}, {448*8192}, s{S_T}
        s_mov_b32 s{SWQ+3}, 0x20000
        s_add_u32 s{SWQ2}, s{SWQ}, {131072 - 1024}
        s_addc_u32 s{SWQ2+1}, s{SWQ+1}, 0
        s_sub_u32 s{SWQ2+2}, s{SWQ+2}, {131072 - 1024}
        s_mov_b32 s{SWQ2+3}, 0x20000
        s_mov_b32 s16, s{S_ROW}
        s_mov_b32 s17, s{S_ROW+1}
        v_lshrrev_b32 v20, 2, v10
        v_and_b32 v21, 3, v10
        v_lshrrev_b32 v22, 5, v10
        v_bfe_u32 v23, v10, 4, 1
        v_and_b32 v24, 3, v20
        v_lshl_add_u32 v24, v23, 3, v24
        v_lshlrev_b32 v24, 13, v24
        v_xor_b32 v25, v21, v23
        v_lshlrev_b32 v25, 4, v25
        v_lshl_add_u32 v26, v22, 6, v25
        s_lshl_b32 s3, s{S_W}, 7
        v_add3_u32 v5, v24, v26, s3
        s_lshl_b32 s3, s{S_W}, 11
        s_add_u32 s{S_ROW}, s3, {RING0}
        s_movk_i32 s{S_OFF}, 0x2000
        """)
        for k in range(1, 7): g.e(f's_add_u32 s{S_ROW+k}, s{S_ROW+k-1}, s{S_OFF}')
        g.e(f"""
        s_mov_b32 s{S_C32K}, 32768
        s_mov_b32 s{S_C224K}, 229376
        """)
        self.addr['wq'] = {'d': 5, 'r': (6, 7)}
        pump()
        self.stamp('P wq0')
        if c.touch_wq:
            g.e(f"""
            s_mul_i32 s3, s5, 56
            s_mul_i32 s{S_SCR}, s{S_W}, 14
            s_add_u32 s3, s3, s{S_SCR}
            v_min_u32 v28, 13, v20
            v_add_u32 v28, s3, v28
            v_lshlrev_b32 v28, 13, v28
            v_lshl_add_u32 v157, v21, 7, v28
            """)
            self.addr['touch_wq'] = {'d': 157, 's': SWQ}
        g.e(f"""
        s_lshl_b32 s{S_SCR}, s{S_W}, 8
        s_add_u32 s{S_SCR}, s{S_SCR}, {SCR}
        s_and_b32 s3, s{S_W}, 1
        s_mul_i32 s{S_XM3}, s3, 7168
        s_add_u32 s{S_XM3}, s{S_XM3}, {3*28672}
        s_lshr_b32 s3, s{S_W}, 1
        s_mul_i32 s3, s3, 3
        s_mul_i32 s{S_T2}, s3, 7168
        s_add_u32 s{S_X3O}, s{S_X3O}, s{S_T2}
        s_lshl_b32 s3, s3, 10
        s_add_u32 s{S_XM3}, s{S_XM3}, s3
        """)
        self.addr['x3'] = 9
        pump()
        self.stamp('P touch+wq1')
        g.e(f"""
        s_lshr_b32 s3, s6, 1
        s_cmp_eq_u32 s7, 0
        s_cselect_b32 s3, s3, s6
        s_cselect_b32 s4, 8, 16
        s_mul_i32 s4, s4, s5
        s_add_u32 s4, s4, s3
        s_lshl_b32 s4, s4, 18
        s_add_u32 s{SK}, s10, s4
        s_addc_u32 s{SK+1}, s11, 0
        s_and_b32 s{SK+1}, s{SK+1}, 0xffff
        s_mov_b32 s{SK+2}, 262144
        s_mov_b32 s{SK+3}, 0x20000
        s_add_u32 s{SK2}, s{SK}, {4096 - 1024}
        s_addc_u32 s{SK2+1}, s{SK+1}, 0
        s_mov_b32 s{SK2+2}, {262144 - 4096 + 1024}
        s_mov_b32 s{SK2+3}, 0x20000
        v_lshl_add_u32 v3, v16, 9, v17
        s_lshl_b32 s3, s{S_W}, 16
        v_add_u32 v3, s3, v3
        s_lshl_b32 s3, s{S_W}, 11
        s_mov_b32 s{S_ROW+7}, s3
        s_movk_i32 s{S_OFF}, 0x2000
        """)
        for k in range(8, 14): g.e(f's_add_u32 s{S_ROW+k}, s{S_ROW+k-1}, s{S_OFF}')
        self.addr['k'] = {'d': 3, 'r': (4, 15)}
        if c.lrows_p1: self.addr['k']['rl'] = (156, 158)
        pump()
        g.e(f"""
        v_lshrrev_b32 v28, 4, v10
        v_and_b32 v29, 6, v10
        v_xor_b32 v28, v28, v29
        v_lshlrev_b32 v28, 4, v28
        v_and_b32 v29, 7, v10
        v_lshl_add_u32 v28, v29, 7, v28
        v_bfe_u32 v29, v10, 3, 1
        v_lshl_add_u32 v1, v29, 10, v28
        v_add_u32 v2, 0x10000, v1
        v_xor_b32 v11, 64, v1
        v_xor_b32 v12, 64, v2
        v_add_u32 v4, s{S_ROW}, v1
        v_xor_b32 v15, 64, v4
        v_add_u32 v156, s3, v1
        v_xor_b32 v158, 64, v156
        v_and_b32 v28, 7, v20
        v_lshlrev_b32 v28, 6, v28
        v_lshl_add_u32 v28, v22, 10, v28
        v_add_u32 v28, v28, v25
        v_and_b32 v29, 1, v21
        v_lshl_add_u32 v28, v29, 3, v28
        v_add_u32 v6, s{S_ROW}, v28
        v_xor_b32 v7, 8, v6
        v_add_u32 v159, s3, v28
        v_xor_b32 v160, 8, v159
        s_add_u32 s{SV}, s16, s4
        s_addc_u32 s{SV+1}, s17, 0
        s_and_b32 s{SV+1}, s{SV+1}, 0xffff
        s_mov_b32 s{SV+2}, 262144
        s_mov_b32 s{SV+3}, 0x20000
        s_add_u32 s{SV2}, s{SV}, {4096 - 1024}
        s_addc_u32 s{SV2+1}, s{SV+1}, 0
        s_mov_b32 s{SV2+2}, {262144 - 4096 + 1024}
        s_mov_b32 s{SV2+3}, 0x20000
        s_lshl_b32 s3, s7, 3
        s_add_u32 s3, s3, s5
        s_mul_i32 s3, s3, 1605632
        s_add_u32 s{SWS}, s14, s3
        s_addc_u32 s{SWS+1}, s15, 0
        s_and_b32 s{SWS+1}, s{SWS+1}, 0xffff
        s_mov_b32 s{SWS+2}, 1605632
        s_mov_b32 s{SWS+3}, 0x20000
        s_mul_i32 s{S_ST}, s6, 100352
        s_mul_i32 s3, s{S_W}, 28672
        s_add_u32 s{S_ST}, s{S_ST}, s3
        s_mov_b32 s{S_C}, 0x3db8aa3b
        s_mov_b32 s{S_C+1}, 0x3db8aa3b
        """)
        if c.lrows_p1 and c.lrows_wq: self.addr['wq']['rl'] = (159, 160)
        self.stamp('prologue')

    ACC1 = 16; B1 = 128
    def acc1(self, r, t): return self.ACC1 + (r * 4 + t) * 4
    def x_read(self, s, r):
        off = (s >> 1) * 14336 + r * 2048; va = (1, 11)[s & 1]
        if off >= 65536: off -= 65536; va = (2, 12)[s & 1]
        self.xb[(s, r)] = self.bread_(f'ds_read_b128 {vr(self.B1 + 4*r)}, v{va} offset:{off}')
    def wsteps(self, kind, *a): return [self.by[(kind,) + a + (0,)], self.by[(kind,) + a + (1,)]]
    def avail(self, rows):
        for r in rows: r.avail = True; r.prev = None
    def phase1(self):
        g = self.g; c = self.c
        self.xb = {}
        self.ensure(self.wsteps('wq', 0))
        self.wait_x(0); g.barrier()
        for r in range(7): self.x_read(0, r)
        self.stamp('p1 start')
        for s in range(14):
            mf = []
            for r in range(7):
                for t in range(4):
                    a = self.acc1(r, t)
                    cc = '0' if s == 0 else vr(a)
                    def pre(s=s, r=r, t=t):
                        if r == 0 and t == 0: self.wwait('wq', s)
                        if t == 0: g.wait_lg_lazy(self.xb[(s, r)], c.age)
                    def txt(s=s, a=a, r=r, t=t, cc=cc):
                        return f'{MF} {vr(a)}, {self.wfrag(("wq", s), t)}, {vr(self.B1 + 4*r)}, {cc}'
                    mf.append((txt, pre))
            fl = []
            def bar(s=s):
                nb = False
                if s == 3: self.wait_x(1); nb = True
                if s == 7: self.wait_x(2); self.wait_x(3); nb = True
                if c.lrows_p1 and s in (c.l_a, c.l_b): nb = True
                if nb: g.barrier()
                if c.lrows_p1 and s == c.l_a: self.avail(self.L[0:3])
                if c.lrows_p1 and s == c.l_b: self.avail(self.L[0:0] + self.L[3:5])
            fl.append((0.1, bar))
            if s < 13:
                n = s + 1
                for r in range(7): fl.append((4 * r + 3, lambda n=n, r=r: self.x_read(n, r)))
                fl.append((c.look, lambda n=n: self.need(self.wsteps('wq', n))))
                fl.append((27.9, lambda n=n: self.ensure(self.wsteps('wq', n))))
            self.run(mf, fl)
            self.a_release_w(('wq', s))
            self.stamp(f'_p{s}')
        self.stamp('p1 end')

    def wo_srds(self):
        g = self.g
        g.e(f"""
        s_mul_i32 s3, s6, 229376
        s_add_u32 s{SWO}, s{S_WOP}, s3
        s_addc_u32 s{SWO+1}, s{S_WOP+1}, 0
        s_and_b32 s{SWO+1}, s{SWO+1}, 0xffff
        s_mov_b32 s{SWO+2}, 229376
        s_mov_b32 s{SWO+3}, 0x20000
        s_add_u32 s{SWOb}, s{SWO}, {7168 - 1024}
        s_addc_u32 s{SWOb+1}, s{SWO+1}, 0
        s_mov_b32 s{SWOb+2}, {229376 - 7168 + 1024}
        s_mov_b32 s{SWOb+3}, 0x20000
        """)
    def q_write(self):
        g = self.g; c = self.c
        assert all(it.pdone() for it in self.items if it.kind == 'wq')
        g.e(f"""
        v_bfe_u32 v13, v10, 4, 1
        v_lshl_add_u32 v11, v13, 3, v0
        s_mul_i32 s3, s{S_W}, 14336
        s_add_u32 s3, s3, {QBASE}
        v_add_u32 v11, s3, v11
        v_xor_b32 v12, 8, v11
        s_barrier
        """)
        T = 164; k = 0
        for r in range(7):
            for hp in range(2):
                for b in range(2):
                    d = T + 2 * (k % 16); k += 1
                    a = self.acc1(r, 2 * hp + b)
                    g.e(f'v_cvt_pk_bf16_f32 v{d}, v{a}, v{a+1}')
                    g.e(f'v_cvt_pk_bf16_f32 v{d+1}, v{a+2}, v{a+3}')
                    g.e(f'ds_write_b64 v{11+b}, {vr(d,2)} offset:{(hp*7 + r)*1024}')
                self.tick(True)
        g.e(f"""
        v_lshrrev_b32 v24, 2, v10
        v_and_b32 v24, 7, v24
        v_and_b32 v25, 3, v10
        v_lshrrev_b32 v16, 5, v10
        v_lshlrev_b32 v17, 1, v13
        v_xor_b32 v18, v25, v17
        v_lshlrev_b32 v18, 4, v18
        v_lshl_add_u32 v18, v16, 6, v18
        v_lshl_add_u32 v18, v24, 9, v18
        s_lshl_b32 s3, s{S_W}, 7
        v_add_u32 v5, s3, v18
        v_lshlrev_b32 v18, 6, v24
        v_lshl_add_u32 v18, v16, 10, v18
        v_lshrrev_b32 v19, 1, v25
        v_add_u32 v19, v19, v17
        v_lshl_add_u32 v18, v19, 4, v18
        v_and_b32 v19, 1, v25
        v_lshl_add_u32 v18, v19, 3, v18
        v_add_u32 v6, s{S_ROW}, v18
        v_xor_b32 v7, 32, v6
        v_mov_b32 v1, v156
        v_mov_b32 v252, v15
        v_mov_b32 v253, v158
        v_add_u32 v2, {QBASE}, v0
        """)
        self.addr['v'] = {'d': 5, 'r': (6, 7)}
        self.addr['k']['r'] = (4, 252)
        if c.lrows_p1: self.addr['k']['rl'] = (1, 253)
        self.wo_srds()
        if c.touch_wo:
            pass
        g.wait_lg_all(); g.barrier()
        self.stamp('q_write')

    SACC = 8; BQ = 232; NBQ = 5
    def sacc(self, r, t): return self.SACC + (r * 8 + t) * 4
    def qk(self):
        g = self.g; c = self.c
        units = [(pi, wp) for pi in range(len(c.passes)) for wp in range(4)]
        def uitems(pi, wp): return [self.by[('k', t, wp)] for t in c.passes[pi]]
        seq = [(pi, ks, r) for pi in range(len(c.passes)) for ks in range(8) for r in range(7)]
        rd = {}
        NB = self.NBQ
        if c.touch_wo:
            NB = 5
            g.e(f"""
            s_mul_i32 s3, s5, 224
            s_mul_i32 s{S_T}, s{S_W}, 56
            s_add_u32 s3, s3, s{S_T}
            v_lshrrev_b32 v254, 4, v0
            v_min_u32 v254, 55, v254
            v_add_u32 v254, s3, v254
            v_lshlrev_b32 v254, 7, v254
            """)
            self.addr['touch_wo'] = {'d': 254, 's': SWO}
        def bread(f):
            pi, ks, r = seq[f]
            rd[f] = self.bread_(f'ds_read_b128 {vr(self.BQ + 4*(f % NB))}, v2 offset:{(ks*7 + r)*1024}')
        for f in range(NB - 1): bread(f)
        self.ensure(uitems(0, 0))
        f = 0
        retire = self.L[:5] + self.R[:2]
        for ui, (pi, wp) in enumerate(units):
            T = c.passes[pi]; nT = len(T)
            if ui == c.stop_unit and not c.cheat:
                for r in retire: r.avail = False
            mf = []; fl = []
            for e in range(2):
                ks = 2 * wp + e
                for r in range(7):
                    for ti, t in enumerate(T):
                        a = self.sacc(r, t)
                        cc = '0' if ks == 0 else vr(a)
                        def pre(f=f, t=t, wp=wp, ti=ti, r=r, e=e):
                            if ti == 0: g.wait_lg_lazy(rd[f], 80)
                            if r == 0 and e == 0: g.wait_lg_lazy(self.by[('k', t, wp)].rd, 80)
                        def txt(a=a, t=t, wp=wp, e=e, f=f, cc=cc):
                            return f'{MF} {vr(a)}, {ar(self.by[("k", t, wp)].reg + 4*e)}, {vr(self.BQ + 4*(f % NB))}, {cc}'
                        mf.append((txt, pre))
                    if f + NB - 1 < len(seq):
                        fl.append((len(mf) - nT + 0.2, lambda f=f: bread(f + NB - 1)))
                    f += 1
            n = len(mf)
            if ui + 1 < len(units):
                fl.append((n * c.look / 28, lambda u=units[ui + 1]: self.need(uitems(*u))))
                fl.append((n - 0.1, lambda u=units[ui + 1]: self.ensure(uitems(*u))))
            self.run(mf, fl)
            for t in T: self.a_release_k(t, wp)
            self.stamp(f'_q{ui}')
        self.stamp('qk end')

    def softmax(self):
        g = self.g; c = self.c
        M = 232; TM = 240
        tk = lambda: self.tick(True)
        g.e(f"""
        s_mov_b32 s{SWO2}, s{SWO}
        s_mov_b32 s{SWO2+1}, s{SWO+1}
        s_mov_b32 s{SWO2b}, s{SWOb}
        s_mov_b32 s{SWO2b+1}, s{SWOb+1}
        s_cmp_eq_u32 s{S_W}, 3
        s_cselect_b32 s{SWO2+2}, 0, s{SWO+2}
        s_cselect_b32 s{SWO2b+2}, 0, s{SWOb+2}
        """)
        for r in range(7):
            vals = [self.sacc(r, t) + i for t in range(8) for i in range(4)]
            g.e(f'v_max3_f32 v{M+r}, v{vals[0]}, v{vals[1]}, v{vals[2]}')
            k = 3
            while k + 1 < 32:
                g.e(f'v_max3_f32 v{M+r}, v{M+r}, v{vals[k]}, v{vals[k+1]}'); k += 2
                if k % 8 == 3: tk()
            g.e(f'v_max_f32 v{M+r}, v{M+r}, v{vals[31]}')
        def xreduce(base, tmp, op):
            for r in range(7): g.e(f'v_mov_b32 v{tmp+r}, v{base+r}')
            for r in range(7): g.e(f'v_permlane32_swap_b32 v{base+r}, v{tmp+r}')
            for r in range(7): g.e(f'{op} v{base+r}, v{base+r}, v{tmp+r}')
            tk()
            for r in range(7): g.e(f'v_mov_b32 v{tmp+r}, v{base+r}')
            for r in range(7): g.e(f'v_permlane16_swap_b32 v{base+r}, v{tmp+r}')
            for r in range(7): g.e(f'{op} v{base+r}, v{base+r}, v{tmp+r}')
        xreduce(M, TM, 'v_max_f32')
        if not c.cheat: self.retire_rows(self.L[:5] + self.R[:2])
        g.e(f"""
        v_and_b32 v2, 0xf0, v0
        v_add_u32 v2, {MAXA}, v2
        s_lshl_b32 s3, s{S_W}, 2
        v_add_u32 v1, s3, v2
        s_mov_b64 exec, 0xffff
        """)
        for r in range(7): g.e(f'ds_write_b32 v1, v{M+r} offset:{r*256}')
        g.e('s_mov_b64 exec, -1')
        g.wait_lg_all(); g.barrier()
        rd = {}
        for r in range(7):
            if r >= 4:
                rr = r - 4
                g.wait_lg(rd[rr]); b = TM + 4 * (rr % 4)
                g.e(f'v_max3_f32 v{M+rr}, v{b}, v{b+1}, v{b+2}')
                g.e(f'v_max_f32 v{M+rr}, v{M+rr}, v{b+3}')
            rd[r] = g.op(f'ds_read_b128 {vr(TM + 4*(r % 4))}, v2 offset:{r*256}')
        for rr in range(3, 7):
            g.wait_lg(rd[rr]); b = TM + 4 * (rr % 4)
            g.e(f'v_max3_f32 v{M+rr}, v{b}, v{b+1}, v{b+2}')
            g.e(f'v_max_f32 v{M+rr}, v{M+rr}, v{b+3}')
        for r in range(7): g.e(f'v_mul_f32 v{M+r}, s{S_C}, v{M+r}')
        SUM = 240
        g.e(f"""
        s_mul_i32 s3, s{S_W}, 28672
        v_add_u32 v1, s3, v0
        """)
        for r in range(7):
            for q in range(4):
                t0 = self.sacc(r, 2 * q); t1 = self.sacc(r, 2 * q + 1)
                regs = [t0 + i for i in range(4)] + [t1 + i for i in range(4)]
                for x in regs: g.e(f'v_fma_f32 v{x}, v{x}, s{S_C}, -v{M+r}')
                tk()
                for x in regs: g.e(f'v_exp_f32 v{x}, v{x}')
                tk()
                if q == 0:
                    g.e(f'v_add_f32 v{SUM+r}, v{regs[0]}, v{regs[1]}'); rest = regs[2:]
                else:
                    rest = regs
                for x in rest: g.e(f'v_add_f32 v{SUM+r}, v{SUM+r}, v{x}')
                g.e(f'v_cvt_pk_bf16_f32 v{t0}, v{t0}, v{t0+1}')
                g.e(f'v_cvt_pk_bf16_f32 v{t0+1}, v{t0+2}, v{t0+3}')
                g.e(f'v_cvt_pk_bf16_f32 v{t0+2}, v{t1}, v{t1+1}')
                g.e(f'v_cvt_pk_bf16_f32 v{t0+3}, v{t1+2}, v{t1+3}')
                g.e(f'ds_write_b128 v1, {vr(t0)} offset:{(q*7 + r)*1024}')
                tk()
        TM2 = 248
        xreduce(SUM, TM2, 'v_add_f32')
        g.e(f"""
        v_add_u32 v2, {SUMA - MAXA}, v2
        s_lshl_b32 s3, s{S_W}, 2
        v_add_u32 v1, s3, v2
        s_mov_b64 exec, 0xffff
        """)
        for r in range(7): g.e(f'ds_write_b32 v1, v{SUM+r} offset:{r*256}')
        g.e('s_mov_b64 exec, -1')
        g.e('v_add_u32 v1, 0x10000, v0')
        g.e(f"""
        v_lshrrev_b32 v10, 4, v0
        v_lshrrev_b32 v14, 2, v10
        v_and_b32 v14, 7, v14
        v_and_b32 v15, 3, v10
        v_lshrrev_b32 v16, 5, v10
        v_bfe_u32 v13, v10, 4, 1
        v_xor_b32 v17, v15, v13
        v_lshlrev_b32 v17, 4, v17
        v_lshl_add_u32 v18, v16, 6, v17
        s_movk_i32 s3, 896
        v_mad_u32_u24 v18, v14, s3, v18
        s_lshl_b32 s3, s{S_W}, 8
        v_add_u32 v148, s3, v18
        v_lshlrev_b32 v18, 6, v14
        v_lshl_add_u32 v18, v16, 10, v18
        v_add_u32 v18, v18, v17
        v_and_b32 v19, 1, v15
        v_lshl_add_u32 v18, v19, 3, v18
        v_add_u32 v149, s{S_ROW}, v18
        v_xor_b32 v150, 8, v149
        v_subrev_u32 v151, {RING0}, v6
        v_subrev_u32 v152, {RING0}, v7
        v_subrev_u32 v153, {RING0}, v149
        v_subrev_u32 v154, {RING0}, v150
        """)
        self.addr['wo'] = {'d': 148, 'r': (149, 150)}
        if c.lrows_pv:
            self.addr['wo']['rl'] = (153, 154); self.v_rl = (151, 152)
        g.wait_lg_all(); g.barrier()
        self.stamp('softmax end')

    OACC = 8; B3 = 120
    def oacc(self, r, t): return self.OACC + (r * 4 + t) * 4
    def p_read(self, dst, frag):
        off = frag * 1024; va = 0
        if off >= 65536: off -= 65536; va = 1
        return self.bread_(f'ds_read_b128 {vr(dst)}, v{va} offset:{off}')
    def pv(self):
        g = self.g; c = self.c
        pb = {}
        for r in range(7): pb[(0, r)] = self.p_read(self.B3 + 4 * r, r)
        self.ensure(self.wsteps('v', 0))
        for u in range(16):
            mf = []; fl = []
            for r in range(7):
                for t in range(4):
                    a = self.oacc(r, t)
                    cc = '0' if u == 0 else vr(a)
                    def pre(u=u, r=r, t=t):
                        if r == 0 and t == 0: self.wwait('v', u)
                        if t == 0: g.wait_lg_lazy(pb[(u, r)], c.age)
                    def txt(u=u, a=a, r=r, t=t, cc=cc):
                        return f'{MF} {vr(a)}, {self.wfrag(("v", u), t)}, {vr(self.B3 + 4*r)}, {cc}'
                    mf.append((txt, pre))
            if u == 8 and c.lrows_pv:
                def lrows():
                    g.barrier(); self.avail(self.L); self.addr['v']['rl'] = self.v_rl
                fl.append((0.05, lrows))
            if u < 15:
                n = u + 1
                for r in range(7):
                    def f(n=n, r=r): pb[(n, r)] = self.p_read(self.B3 + 4 * r, n * 7 + r)
                    fl.append((4 * r + 3, f))
                fl.append((c.look, lambda n=n: self.need(self.wsteps('v', n))))
                fl.append((27.9, lambda n=n: self.ensure(self.wsteps('v', n))))
            else:
                fl.append((c.look, lambda: self.need(self.wsteps('wo', 0, 0))))
            self.run(mf, fl)
            self.a_release_w(('v', u))
            self.stamp(f'_v{u}')
        self.stamp('pv end')

    def o_write(self):
        g = self.g
        T = 184
        rd = [g.op(f'ds_read_b128 {vr(T + 4*r)}, v2 offset:{r*256}') for r in range(7)]
        g.e(f"""
        s_lshl_b32 s3, s{S_W}, 1
        s_sub_u32 s3, s3, s{S_B}
        s_and_b32 s{S_T}, s3, 7
        s_mul_i32 s{S_T}, s{S_T}, 7168
        s_add_u32 s{S_T}, s{S_T}, {OBASE}
        v_add_u32 v2, s{S_T}, v0
        s_add_u32 s3, s3, 1
        s_and_b32 s{S_T}, s3, 7
        s_mul_i32 s{S_T}, s{S_T}, 7168
        s_add_u32 s{S_T}, s{S_T}, {OBASE}
        v_add_u32 v3, s{S_T}, v0
        v_add_u32 v1, {OBASE}, v0
        """ if self.c.rot_o else f"""
        s_mul_i32 s3, s{S_W}, 14336
        s_add_u32 s3, s3, {OBASE}
        v_add_u32 v2, s3, v0
        v_add_u32 v3, 7168, v2
        v_add_u32 v1, {OBASE}, v0
        """)
        for r in range(7):
            g.wait_lg(rd[r]); b = T + 4 * r
            g.e(f'v_add_f32 v{b}, v{b}, v{b+1}')
            g.e(f'v_add_f32 v{b+2}, v{b+2}, v{b+3}')
        for r in range(7):
            b = T + 4 * r
            g.e(f'v_add_f32 v{b}, v{b}, v{b+2}')
        for r in range(7):
            b = T + 4 * r
            g.e(f'v_rcp_f32 v{b}, v{b}')
        g.barrier()
        P = 212; k = 0
        for r in range(7):
            b = T + 4 * r
            for t in range(4):
                for i in range(4):
                    x = self.oacc(r, t) + i
                    g.e(f'v_mul_f32 v{x}, v{x}, v{b}')
            self.tick(True)
            for hp in range(2):
                d = P + 4 * (k % 8); k += 1
                a0 = self.oacc(r, 2 * hp); a1 = self.oacc(r, 2 * hp + 1)
                g.e(f'v_cvt_pk_bf16_f32 v{d}, v{a0}, v{a0+1}')
                g.e(f'v_cvt_pk_bf16_f32 v{d+1}, v{a0+2}, v{a0+3}')
                g.e(f'v_cvt_pk_bf16_f32 v{d+2}, v{a1}, v{a1+1}')
                g.e(f'v_cvt_pk_bf16_f32 v{d+3}, v{a1+2}, v{a1+3}')
                g.e(f'ds_write_b128 v{2+hp}, {vr(d)} offset:{r*1024}')
                self.tick(True)
        g.wait_lg_all(); g.barrier()
        self.stamp('o_write')

    PK = 188
    def o_read(self, dst, frag):
        return self.bread_(f'ds_read_b128 {vr(dst)}, v1 offset:{frag*1024}')
    def out_proj(self):
        g = self.g; c = self.c
        ob = {}
        def group(gam, pending):
            for ks in range(8):
                mf = []; fl = []
                for r in range(7):
                    for t in range(4):
                        a = self.oacc(r, t)
                        cc = '0' if ks == 0 else vr(a)
                        def pre(ks=ks, r=r, t=t):
                            if r == 0 and t == 0: self.wwait('wo', gam, ks)
                            if t == 0: g.wait_lg_lazy(ob[(gam, ks, r)], c.age)
                        def txt(ks=ks, a=a, r=r, t=t, cc=cc):
                            return f'{MF} {vr(a)}, {self.wfrag(("wo", gam, ks), t)}, {vr(self.B3 + 4*r)}, {cc}'
                        mf.append((txt, pre))
                nxt = None
                if ks < 7: nxt = (gam, ks + 1)
                elif gam == 0: nxt = (1, 0)
                if nxt:
                    ng, nk = nxt
                    for r in range(7):
                        def f(ng=ng, nk=nk, r=r): ob[(ng, nk, r)] = self.o_read(self.B3 + 4 * r, nk * 7 + r)
                        fl.append((4 * r + 3, f))
                    fl.append((c.look, lambda ng=ng, nk=nk: self.need(self.wsteps('wo', ng, nk))))
                    fl.append((27.9, lambda ng=ng, nk=nk: self.ensure(self.wsteps('wo', ng, nk))))
                if pending:
                    take = pending[:4]; del pending[:4]
                    for pos, f in zip(spread(4, 2.5, 24.5), take): fl.append((pos, f))
                if ks == 7:
                    for r in range(7):
                        fl.append((4 * r + 3 + 6.5, lambda r=r: self.pack(r)))
                self.run(mf, fl)
                self.a_release_w(('wo', gam, ks))
                self.stamp(f'_o{gam}{ks}')
            return [(lambda r=r, h=h: self.store(gam, r, h)) for r in range(7) for h in range(2)]
        for r in range(7): ob[(0, 0, r)] = self.o_read(self.B3 + 4 * r, r)
        self.ensure(self.wsteps('wo', 0, 0))
        st0 = group(0, [])
        g.e(f's_cmp_eq_u32 s{S_W}, 3')
        g.e('s_cbranch_scc1 L_w3')
        save = (g.vm, g.vm_done, g.lg, g.lg_done, list(g.out_vm), list(g.out_lg), list(g.hist))
        st1 = group(1, st0[:])
        for f in st1: f()
        g.e('s_branch L_done')
        g.label('L_w3')
        g.vm, g.vm_done, g.lg, g.lg_done, g.out_vm, g.out_lg, g.hist = save
        g.e('s_nop 7')
        g.e('s_waitcnt vmcnt(0) lgkmcnt(0)'); g.vm_done = g.vm; g.lg_done = g.lg
        for f in st0: f()
        g.label('L_done')
    def pack(self, r):
        g = self.g
        for h in range(2):
            d = self.PK + (r * 2 + h) * 4
            a0 = self.oacc(r, 2 * h); a1 = self.oacc(r, 2 * h + 1)
            g.e(f'v_cvt_pk_bf16_f32 v{d}, v{a0}, v{a0+1}')
            g.e(f'v_cvt_pk_bf16_f32 v{d+1}, v{a0+2}, v{a0+3}')
            g.e(f'v_cvt_pk_bf16_f32 v{d+2}, v{a1}, v{a1+1}')
            g.e(f'v_cvt_pk_bf16_f32 v{d+3}, v{a1+2}, v{a1+3}')
    def store(self, gam, r, h):
        g = self.g; c = self.c
        unit = gam * 14 + r * 2 + h
        d = self.PK + (r * 2 + h) * 4
        off = unit * 1024
        g.e(f's_add_u32 s{S_T}, s{S_ST}, {off & ~0xfff}')
        g.op(f'buffer_store_dwordx4 {vr(d)}, v0, {srd(SWS)}, s{S_T} offen offset:{off & 0xfff}{c.st_part}')

    def epilogue(self):
        g = self.g; c = self.c
        if c.stamps:
            g.e('s_waitcnt vmcnt(0) lgkmcnt(0)')
            g.vm_done = g.vm; g.lg_done = g.lg
            self.stamp('end')
            n = self.nst
            g.e(f"""
            s_cmp_lg_u32 s{S_W}, 0
            s_cbranch_scc1 L_exit
            s_mov_b32 s4, s14
            s_and_b32 s5, s15, 0xffff
            s_mov_b32 s6, 0x10000000
            s_mov_b32 s7, 0x20000
            s_mul_i32 s3, s2, {8*n}
            s_add_u32 s3, s3, {200<<20}
            v_mov_b32 v2, 0
            s_mov_b64 exec, 1
            """)
            for k in range(n):
                g.e(f'v_mov_b32 v4, s{S_STAMP+2*k}')
                g.e(f'v_mov_b32 v5, s{S_STAMP+2*k+1}')
                g.e(f'buffer_store_dwordx2 v[4:5], v2, s[4:7], s3 offen offset:{8*k}')
                g.e('s_waitcnt vmcnt(0)'); g.vm_done = g.vm
        else:
            self.log.append(('end', g.t, self.ip, self.pp, g.nbytes))
        g.check = False
        g.label('L_exit')
        g.e('s_endpgm')

    def main_kernel(self):
        self.prologue()
        self.phase1()
        self.q_write()
        self.qk()
        self.softmax()
        self.pv()
        self.o_write()
        self.out_proj()
        self.epilogue()
        return self.g.text()

from gen2 import reduce_kernel

def build(cfg):
    G = Gen(cfg)
    body = G.main_kernel()
    red = reduce_kernel()
    name = 'attn_main_kernel'
    txt = make_file([(name, 256, 256, LDS_BYTES), ('head_reduce_kernel', 392, 256, 0)],
                    [(name, body, 512, 102, 256), ('head_reduce_kernel', red, 96, 40, 96)])
    return txt, G

if __name__ == '__main__':
    ap = argparse.ArgumentParser()
    ap.add_argument('-o', default='f3.s')
    ap.add_argument('--stamps', action='store_true')
    ap.add_argument('--set', action='append', default=[])
    ap.add_argument('-v', action='store_true')
    a = ap.parse_args()
    cfg = Cfg()
    cfg.stamps = a.stamps
    for kv in a.set:
        k, v = kv.split('=', 1)
        setattr(cfg, k, eval(v))
    txt, G = build(cfg)
    open(a.o, 'w').write(txt)
    print('instr', G.g.ninstr, 'nops', G.g.nops, 'stamps', G.nst, 'bytes', len(txt), 'code', G.g.nbytes)
    for nm, t, ip, pp, nb in G.log: print('   %-12s t=%6.2fus issued=%d parked=%d code=%d' % (nm, t / 2000, ip, pp, nb))
    if a.v:
        for it in G.items:
            if it.kind in ('x',): continue
            print(it, it.row, 'issue %.2f arr %.2f park %s reg %s' % (it.tissue / 2000, it.arr / 2000, '%.2f' % (it.tpark / 2000) if it.tpark else '-', it.reg))
```
